```python
import torch

def _softmax(x, axis=-1):
    return torch.softmax(x, dim=axis)

def _gelu(x):
    return torch.nn.functional.gelu(x, approximate='tanh')

def _silu(x):
    return torch.nn.functional.silu(x)

def _sigmoid(x):
    return torch.sigmoid(x)

def _layernorm(x, axis=-1, eps=1e-05):
    m = x.mean(dim=axis, keepdim=True)
    v = x.var(dim=axis, keepdim=True, unbiased=False)
    return (x - m) / torch.sqrt(v + eps)

def _scatter_add(tgt, idx, src, axis=0):
    return tgt.clone().index_add_(axis, idx, src)

def _segment_sum(src, seg, n):
    out = torch.zeros((n,) + src.shape[1:], dtype=src.dtype)
    return out.index_add_(0, seg, src)

def _pad(x, pw):
    flat = tuple((v for pair in reversed(pw) for v in pair))
    return torch.nn.functional.pad(x, flat)
kernel_name = 'adaLN_cond__gqa_block_cached__swiglu_ffn__prompt'

def setup_inputs():

    _w = lambda a: (lambda t: t.to(torch.bfloat16) if t.is_floating_point() else t)(torch.as_tensor(a))

    def _A_setup():
        B, Sq, D = (1, 2048, 1024)
        Hq, Hkv, Sk, Dh = (32, 4, 2048, 128)
        assert Hq % Hkv == 0, (Hq, Hkv)
        return {'x': _w((lambda *s: torch.randn(*s, dtype=torch.bfloat16) * 0.05)(B, Sq, D)), 'k_cache': _w((lambda *s: torch.randn(*s, dtype=torch.bfloat16) * 3.2)(B, Hkv, Sk, Dh)), 'v_cache': _w((lambda *s: torch.randn(*s, dtype=torch.bfloat16) * 0.4)(B, Hkv, Sk, Dh)), 'wq': _w((lambda *s: torch.randn(*s, dtype=torch.bfloat16) * 3.2)(D, Hq * Dh) * D ** (-0.5)), 'wo': _w((lambda *s: torch.randn(*s, dtype=torch.bfloat16) * 0.4)(Hq * Dh, D) * (Hq * Dh) ** (-0.5))}
    _A_in = _A_setup()

    def _B_setup():
        B, S, D, F = (1, 2048, 1024, 3584)
        return {'x': _w((lambda *s: torch.randn(*s, dtype=torch.bfloat16) * 0.05)(B, S, D)), 'w_gate': _w((lambda *s: torch.randn(*s, dtype=torch.bfloat16) * 0.05)(D, F)), 'w_up': _w((lambda *s: torch.randn(*s, dtype=torch.bfloat16) * 0.05)(D, F)), 'w_down': _w((lambda *s: torch.randn(*s, dtype=torch.bfloat16) * 0.05)(F, D))}
    _B_in = _B_setup()
    return {'A_x': _A_in['x'], 'A_k_cache': _A_in['k_cache'], 'A_v_cache': _A_in['v_cache'], 'A_wq': _A_in['wq'], 'A_wo': _A_in['wo'], 'B_x': _B_in['x'], 'B_w_gate': _B_in['w_gate'], 'B_w_up': _B_in['w_up'], 'B_w_down': _B_in['w_down'], 'c': _w((lambda *s: torch.randn(*s, dtype=torch.bfloat16) * 0.1)(1, 1024) * 8.0), 'w_mod': _w((lambda *s: torch.randn(*s, dtype=torch.bfloat16) * 0.1)(1024, 6 * 1024) * 1024 ** (-0.5) * 8.0)}

def reference(A_x, A_k_cache, A_v_cache, A_wq, A_wo, B_x, B_w_gate, B_w_up, B_w_down, c, w_mod):

    def _A_ref(x, k_cache, v_cache, wq, wo):
        B, Sq, D = x.shape
        Hq, Dh = (32, 128)
        Hkv = k_cache.shape[1]
        rep = Hq // Hkv
        q = (lambda x, *d: x.permute(*d))((x @ wq).reshape(B, Sq, Hq, Dh), 0, 2, 1, 3)
        k = (lambda x, n, axis: torch.repeat_interleave(x, n, dim=axis))(k_cache, rep, axis=1)
        v = (lambda x, n, axis: torch.repeat_interleave(x, n, dim=axis))(v_cache, rep, axis=1)
        scores = torch.einsum('bhqd,bhkd->bhqk', q, k) * Dh ** (-0.5)
        p = _softmax(scores, axis=-1)
        o = torch.einsum('bhqk,bhkd->bhqd', p, v)
        return (lambda x, *d: x.permute(*d))(o, 0, 2, 1, 3).reshape(B, Sq, Hq * Dh) @ wo

    def _B_ref(x, w_gate, w_up, w_down):
        g = _silu(x @ w_gate)
        u = x @ w_up
        return g * u @ w_down
    x = A_x
    mod = (_silu(c) @ w_mod).reshape(c.shape[0], 6, 1, -1)
    sa, ca, ga, sb, cb, gb = (mod[:, 0].clone(), mod[:, 1].clone(), mod[:, 2].clone(), mod[:, 3].clone(), mod[:, 4].clone(), mod[:, 5].clone())
    h = _layernorm(x, axis=-1) * (1 + ca) + sa
    x = x + ga * _A_ref(h, A_k_cache, A_v_cache, A_wq, A_wo)
    h = _layernorm(x, axis=-1) * (1 + cb) + sb
    x = x + gb * _B_ref(h, B_w_gate, B_w_up, B_w_down)
    return x
```

```python
import re

TRANS = {'v_exp_f32', 'v_log_f32', 'v_rcp_f32', 'v_rsq_f32', 'v_sqrt_f32', 'v_sin_f32', 'v_cos_f32',
         'v_rcp_iflag_f32'}
NODST_S = ('s_cmp', 's_waitcnt', 's_barrier', 's_nop', 's_branch', 's_cbranch', 's_endpgm', 's_setprio',
           's_sleep', 's_bitcmp')

def _regs(tok):
    tok = tok.strip()
    if not tok:
        return []
    tok = tok.split()[0]
    tok = tok.lstrip('-')
    if tok.startswith('abs(') and tok.endswith(')'):
        tok = tok[4:-1]
    if tok.startswith('|') and tok.endswith('|'):
        tok = tok[1:-1]
    m = re.fullmatch(r'([vsa])(\d+)', tok)
    if m:
        return [(m.group(1), int(m.group(2)))]
    m = re.fullmatch(r'([vsa])\[(\d+):(\d+)\]', tok)
    if m:
        return [(m.group(1), i) for i in range(int(m.group(2)), int(m.group(3)) + 1)]
    if tok == 'vcc':
        return [('s', 106), ('s', 107)]
    if tok == 'm0':
        return [('m0', 0)]
    if tok == 'exec':
        return [('exec', 0)]
    return []

class Ins:
    __slots__ = ('text', 'op', 'kind', 'w', 'r', 'rc', 'passes', 'ws', 'label', 'target', 'wide_store', 'sdata')
    def __init__(self, text):
        self.text = text
        t = text.split(';')[0].strip()
        self.label = None; self.target = None
        self.w = []; self.r = []; self.rc = []; self.passes = 0; self.ws = 1
        self.wide_store = False; self.sdata = []
        if t.endswith(':'):
            self.op = 'label'; self.kind = 'label'; self.label = t[:-1]; self.ws = 0
            return
        if t.startswith('.') or not t:
            self.op = 'dir'; self.kind = 'dir'; self.ws = 0
            return
        parts = t.split(None, 1)
        op = parts[0]
        op = re.sub(r'_e(32|64)$', '', op)
        self.op = op
        ops = [o.strip() for o in parts[1].split(',')] if len(parts) > 1 else []
        R = lambda lst: [x for o in lst for x in _regs(o)]
        if op.startswith('v_mfma'):
            self.kind = 'mfma'
            self.w = R(ops[:1]); self.r = R(ops[1:3]); self.rc = R(ops[3:4])
            self.passes = 8 if '32x32x16' in op else 4
        elif op.startswith('v_'):
            self.kind = 'trans' if op in TRANS else 'valu'
            if op.startswith('v_permlane') and 'swap' in op:
                self.w = R(ops[:2]); self.r = R(ops[:2]); self.kind = 'permlane'
            elif op in ('v_add_co_u32', 'v_sub_co_u32', 'v_addc_co_u32', 'v_subb_co_u32'):
                self.w = R(ops[:2]); self.r = R(ops[2:])
            elif op.startswith('v_fmac') or op.startswith('v_pk_fmac'):
                self.w = R(ops[:1]); self.r = R(ops)
            elif op in ('v_readfirstlane_b32', 'v_readlane_b32'):
                self.w = R(ops[:1]); self.r = R(ops[1:]); self.kind = 'readlane'
            else:
                self.w = R(ops[:1]); self.r = R(ops[1:])
            if 'dpp' in t or 'row_' in t or 'quad_perm' in t:
                self.kind = 'permlane'
        elif op.startswith('ds_'):
            self.kind = 'ds'
            if op.startswith('ds_write'):
                self.r = R(ops)
            else:
                self.w = R(ops[:1]); self.r = R(ops[1:])
        elif op.startswith('buffer_') or op.startswith('global_'):
            self.kind = 'vmem'
            is_lds = bool(re.search(r'\blds\b', t)) or '_lds_' in op
            if 'store' in op or is_lds or 'atomic' in op:
                self.r = R(ops)
                if is_lds:
                    self.r.append(('m0', 0)); self.kind = 'dma'
                if 'store' in op and ('x4' in op or 'x3' in op):
                    self.wide_store = True
                    self.sdata = R(ops[:1]) if op.startswith('buffer_') else R(ops[1:2])
            else:
                self.w = R(ops[:1]); self.r = R(ops[1:])
        elif op.startswith('s_'):
            self.kind = 'salu'
            if op == 's_nop':
                self.ws = int(ops[0], 0) + 1
            elif op.startswith(NODST_S):
                self.r = R(ops)
                if op.startswith('s_branch') or op.startswith('s_cbranch'):
                    self.target = ops[0]
            else:
                self.w = R(ops[:1]); self.r = R(ops[1:])
                if 'saveexec' in op:
                    self.w.append(('exec', 0))
        else:
            raise ValueError('unknown instr: ' + text)

VALUK = ('valu', 'trans', 'permlane', 'readlane')

def need_between(p, c):
    n = 0
    pw = set(p.w)
    if p.kind in VALUK:
        vw = {x for x in pw if x[0] in 'va'}
        sw = {x for x in pw if x[0] == 's'}
        if vw:
            if c.kind == 'mfma' and vw & set(c.r + c.rc): n = max(n, 2)
            if c.kind == 'readlane' and vw & set(c.r): n = max(n, 1)
            if c.kind == 'permlane' and vw & set(c.r): n = max(n, 2)
            if p.kind == 'trans' and c.kind in VALUK and c.kind != 'trans' and vw & set(c.r): n = max(n, 1)
        if sw:
            if c.kind in VALUK and sw & set(c.r): n = max(n, 4 if c.kind == 'readlane' else 2)
            if c.kind in ('vmem', 'dma') and sw & set(c.r): n = max(n, 5)
            if c.kind == 'salu' and sw & set(c.r): n = max(n, 1)
    if p.kind == 'mfma':
        big = {4: 8, 8: 12}[p.passes]
        if c.kind == 'mfma':
            if pw & set(c.r): n = max(n, big)
            if pw & set(c.rc):
                if c.rc == p.w and c.passes == p.passes: pass
                else: n = max(n, {4: 6, 8: 10}[p.passes])
        elif c.kind in VALUK or c.kind in ('ds', 'vmem', 'dma'):
            if pw & (set(c.r) | set(c.w)): n = max(n, big)
        if c.kind in VALUK and set(p.rc) & set(c.w): n = max(n, {4: 3, 8: 7}[p.passes])
    if p.kind == 'salu' and ('m0', 0) in pw and c.kind == 'dma': n = max(n, 1)
    if p.wide_store and set(p.sdata) & set(c.w):
        n = max(n, 2 if c.kind in VALUK else 1)
    return n

LOOKBACK = 24

class Kernel:
    def __init__(self, name):
        self.name = name
        self.ins = []
    def __call__(self, text):
        for line in text.strip().split('\n'):
            line = line.strip()
            if line and not line.startswith(';'):
                self.ins.append(Ins(line))
    def pad(self):
        ins = self.ins
        def mkpreds():
            preds = {}
            for k, i in enumerate(ins):
                if i.target is not None:
                    preds.setdefault(i.target, []).append(k)
            return preds
        for npass in range(20):
            changed = False
            preds = mkpreds()
            k = 0
            while k < len(ins):
                c = ins[k]
                if c.kind in ('label', 'dir'):
                    k += 1; continue
                need = 0
                stack = [(k - 1, 0, False)]
                seen = set()
                while stack:
                    j, d, from_branch = stack.pop()
                    first = True
                    while j >= 0 and d < LOOKBACK:
                        p = ins[j]
                        if p.kind == 'label':
                            for b in preds.get(p.label, []):
                                if (b, d) not in seen:
                                    seen.add((b, d)); stack.append((b, d, True))
                            j -= 1; first = False; continue
                        if p.kind == 'dir':
                            j -= 1; continue
                        if p.op in ('s_branch', 's_endpgm') and not (from_branch and first):
                            break
                        first = False
                        req = need_between(p, c)
                        if req > d: need = max(need, req - d)
                        d += p.ws
                        j -= 1
                if need > 0:
                    ins.insert(k, Ins('s_nop %d' % (need - 1))); changed = True
                    preds = mkpreds()
                    k += 1
                k += 1
            if not changed:
                break
    def text(self):
        return '\n'.join(('    ' + i.text if i.kind not in ('label',) else i.text) for i in self.ins)
```

```python
from asmlib import Kernel
from gen import *

def gen_attn():
    name = 'attn_kernel'
    k = Kernel(name)
    L = lambda s: f'L_{name}_{s}'
    NT = 32
    KSL = 16384
    VB = 3 * KSL
    Q = 4
    S0 = 36; S1 = 68
    O = 100
    P = 164
    KF = 180
    VF = 196
    AK = 212
    AV = 220
    DM = 224
    M = 228; LS = 229; AL = 230; MN = 231; T = 232
    SUM = 240
    NV = 244
    k(f'''
    s_cmp_ge_u32 s2, 256
    s_cbranch_scc1 {L('end')}
    s_load_dwordx2 s[4:5], s[0:1], {KA['ws']}
    s_load_dwordx2 s[6:7], s[0:1], {KA['k']}
    s_load_dwordx2 s[40:41], s[0:1], {KA['v']}
    v_lshrrev_b32 v{T}, 6, v0
    v_and_b32 v0, 63, v0
    s_nop 0
    v_readfirstlane_b32 s34, v{T}
    s_and_b32 s3, s2, 7
    s_lshr_b32 s35, s2, 3
    ''')
    k(f'''
    s_lshr_b32 s32, s3, 1
    s_lshl_b32 s33, s3, 2
    s_and_b32 s36, s35, 3
    s_add_u32 s33, s33, s36
    s_lshr_b32 s36, s35, 2
    s_waitcnt lgkmcnt(0)
    ''')
    srd(k, 8, 4, 5, 2048 * 8192, WS_Q)
    srd(k, 20, 4, 5, 2048 * 8192, WS_O)
    k(f'''
    s_lshl_b32 s37, s32, 19
    s_add_u32 s12, s6, s37
    s_addc_u32 s13, s7, 0
    s_mov_b32 s14, 0x80000
    s_mov_b32 s15, 0x00020000
    s_add_u32 s16, s40, s37
    s_addc_u32 s17, s41, 0
    s_mov_b32 s18, 0x80000
    s_mov_b32 s19, 0x00020000
    ''')
    k(f'''
    v_and_b32 v{T}, 31, v0
    v_lshrrev_b32 v{T+1}, 5, v0
    s_lshl_b32 s37, s36, 8
    s_lshl_b32 s38, s34, 5
    s_add_u32 s37, s37, s38
    v_add_u32 v{T+2}, s37, v{T}
    v_lshlrev_b32 v{T+2}, 13, v{T+2}
    s_lshl_b32 s38, s33, 8
    v_lshl_add_u32 v{T+3}, v{T+1}, 4, s38
    v_add_u32 v{T+2}, v{T+2}, v{T+3}
    ''')
    for s in range(8):
        k(f'buffer_load_dwordx4 v[{Q+4*s}:{Q+4*s+3}], v{T+2}, s[8:11], 0 offen offset:{s*32}')
    k(f'''
    v_lshrrev_b32 v{T+3}, 4, v0
    v_and_b32 v{T+4}, 15, v0
    s_lshl_b32 s37, s34, 3
    ''')
    for j in range(2):
        k(f'''
        v_add_u32 v{T+5}, s37, v{T+3}
        v_add_u32 v{T+5}, {4*j}, v{T+5}
        v_and_b32 v{T+6}, 15, v{T+5}
        v_xor_b32 v{T+6}, v{T+4}, v{T+6}
        v_lshlrev_b32 v{T+6}, 4, v{T+6}
        v_lshl_add_u32 v{DM+j}, v{T+5}, 8, v{T+6}
        v_lshlrev_b32 v{T+6}, 2, v{T+3}
        v_xor_b32 v{T+6}, v{T+4}, v{T+6}
        v_lshlrev_b32 v{T+6}, 4, v{T+6}
        v_lshl_add_u32 v{DM+2+j}, v{T+5}, 8, v{T+6}
        ''')
    k(f'''
    v_and_b32 v{T+3}, 1, v{T}
    v_xor_b32 v{T+3}, v{T+1}, v{T+3}
    v_lshlrev_b32 v{T+3}, 4, v{T+3}
    v_lshl_add_u32 v{T+3}, v{T}, 8, v{T+3}
    v_bfe_u32 v{T+4}, v{T}, 1, 3
    ''')
    for s in range(8):
        k(f'''
        v_xor_b32 v{T+5}, {s}, v{T+4}
        v_lshl_add_u32 v{AK+s}, v{T+5}, 5, v{T+3}
        ''')
    k(f'''
    v_and_b32 v{T+3}, 15, v0
    v_lshrrev_b32 v{T+4}, 2, v{T+3}
    v_lshl_add_u32 v{T+5}, v{T+1}, 2, v{T+4}
    v_lshlrev_b32 v{T+5}, 8, v{T+5}
    v_bfe_u32 v{T+6}, v0, 4, 1
    v_lshl_add_u32 v{T+5}, v{T+6}, 5, v{T+5}
    v_and_b32 v{T+6}, 3, v{T+3}
    v_lshl_add_u32 v{T+5}, v{T+6}, 3, v{T+5}
    v_add_u32 v{T+5}, {VB}, v{T+5}
    ''')
    for db in range(4):
        k(f'''
        v_xor_b32 v{T+6}, {db}, v{T+4}
        v_lshl_add_u32 v{AV+db}, v{T+6}, 6, v{T+5}
        ''')
    for i in range(64):
        k(f'v_mov_b32 v{O+i}, 0')
    k(f'''
    v_mov_b32 v{M}, 0xff800000
    v_mov_b32 v{LS}, 0
    s_mov_b32 s44, 0x{LOG2E:x}
    s_mov_b32 s45, 0x{SCALE:x}
    s_lshl_b32 s46, s34, 11
    ''')
    def dmaK(slot):
        for j in range(2):
            k(f'''
            s_add_u32 m0, s46, {slot*KSL + j*1024}
            s_nop 0
            buffer_load_dwordx4 v{DM+j}, s[12:15], s47 offen lds
            ''')
        k('s_add_u32 s47, s47, 16384')
    def dmaV(slot):
        for j in range(2):
            k(f'''
            s_add_u32 m0, s46, {VB + slot*KSL + j*1024}
            s_nop 0
            buffer_load_dwordx4 v{DM+2+j}, s[16:19], s48 offen lds
            ''')
        k('s_add_u32 s48, s48, 16384')
    def kread(slot, n):
        kb, s = n >> 3, n & 7
        r = KF + (n & 3) * 4
        return f'ds_read_b128 v[{r}:{r+3}], v{AK+s} offset:{slot*KSL + kb*8192}'
    def qk(S, n):
        kb, s = n >> 3, n & 7
        r = KF + (n & 3) * 4
        d = S + kb * 16
        c = '0' if s == 0 else f'v[{d}:{d+15}]'
        return f'v_mfma_f32_32x32x16_bf16 v[{d}:{d+15}], v[{r}:{r+3}], v[{Q+4*s}:{Q+4*s+3}], {c}'
    def vread(slot, n):
        db, j = n >> 2, n & 3
        r = VF + (n & 3) * 4
        return [f'ds_read_b64_tr_b16 v[{r}:{r+1}], v{AV+db} offset:{slot*KSL + (16*j)*256}',
                f'ds_read_b64_tr_b16 v[{r+2}:{r+3}], v{AV+db} offset:{slot*KSL + (16*j+8)*256}']
    def pv(n):
        db, j = n >> 2, n & 3
        r = VF + (n & 3) * 4
        d = O + db * 16
        return f'v_mfma_f32_32x32x16_bf16 v[{d}:{d+15}], v[{r}:{r+3}], v[{P+4*j}:{P+4*j+3}], v[{d}:{d+15}]'
    def valuA(S):
        o = []
        for i in range(32):
            o.append(f'v_cvt_pk_bf16_f32 v{S+i}, 0, v{S+i}')
            o.append(f'v_mul_f32 v{S+i}, s45, v{S+i}')
            o.append(f'v_cvt_pk_bf16_f32 v{S+i}, 0, v{S+i}')
        mx = []
        for c in range(4):
            b = S + 8 * c
            mx.append(f'v_max3_f32 v{T+c}, v{b}, v{b+1}, v{b+2}')
            mx.append(f'v_max3_f32 v{T+c}, v{T+c}, v{b+3}, v{b+4}')
            mx.append(f'v_max3_f32 v{T+c}, v{T+c}, v{b+5}, v{b+6}')
        o += mx
        o.append(f'v_max3_f32 v{T}, v{T}, v{S+7}, v{S+15}')
        o.append(f'v_max3_f32 v{T+2}, v{T+2}, v{S+23}, v{S+31}')
        o.append(f'v_max3_f32 v{T}, v{T}, v{T+1}, v{T+2}')
        o.append(f'v_max3_f32 v{T}, v{T}, v{T+3}, v{M}')
        o.append(f'v_mov_b32 v{T+1}, v{T}')
        o.append(f'v_permlane32_swap_b32 v{T}, v{T+1}')
        o.append(f'v_max_f32 v{T}, v{T}, v{T+1}')
        o.append(f'v_mul_f32 v{MN}, s44, v{T}')
        o.append(f'v_fma_f32 v{T+1}, v{M}, s44, -v{MN}')
        o.append(f'v_exp_f32 v{AL}, v{T+1}')
        o.append(f'v_mov_b32 v{M}, v{T}')
        return o
    def valuB(S):
        o = []
        for i in range(32):
            o.append(f'v_fma_f32 v{S+i}, v{S+i}, s44, -v{MN}')
            o.append(f'v_exp_f32 v{S+i}, v{S+i}')
        for i in range(32):
            c = i & 3
            if i < 4:
                o.append(f'v_mov_b32 v{SUM+c}, v{S+i}')
            else:
                o.append(f'v_add_f32 v{SUM+c}, v{SUM+c}, v{S+i}')
            if i & 1:
                o.append(f'v_cvt_pk_bf16_f32 v{P+(i>>1)}, v{S+i-1}, v{S+i}')
        o.append(f'v_add_f32 v{SUM}, v{SUM}, v{SUM+1}')
        o.append(f'v_add_f32 v{SUM+2}, v{SUM+2}, v{SUM+3}')
        o.append(f'v_add_f32 v{SUM}, v{SUM}, v{SUM+2}')
        o.append(f'v_fma_f32 v{LS}, v{LS}, v{AL}, v{SUM}')
        return o
    def rescale(db):
        return [f'v_mul_f32 v{O+db*16+i}, v{AL}, v{O+db*16+i}' for i in range(16)]

    def phaseX(kslot, Snext, Scur, do_qk, do_b):
        va = valuB(Scur) if do_b else []
        if not do_qk:
            for x in va: k(x)
            return
        for n in range(4): k(kread(kslot, n))
        per = (len(va) + 15) // 16
        vi = 0
        for n in range(16):
            for x in va[vi:vi + per]: k(x)
            vi += per
            k(f's_waitcnt lgkmcnt({min(3, 15 - n)})')
            k(qk(Snext, n))
            if n + 4 < 16: k(kread(kslot, n + 4))
        for x in va[vi:]: k(x)
    def phaseY(vslot, Snext, do_a):
        va = valuA(Snext) if do_a else []
        for n in range(4):
            for x in vread(vslot, n): k(x)
        per = (len(va) + 15) // 16
        vi = 0
        for x in rescale(0): k(x)
        for n in range(16):
            k(f's_waitcnt lgkmcnt({2*min(3, 15 - n)})')
            k(pv(n))
            if n + 4 < 16:
                for x in vread(vslot, n + 4): k(x)
            if (n & 3) == 0 and n + 4 < 16:
                for x in rescale((n >> 2) + 1): k(x)
            for x in va[vi:vi + per]: k(x)
            vi += per
        for x in va[vi:]: k(x)

    k('s_mov_b32 s47, 0')
    k('s_mov_b32 s48, 0')
    dmaK(0); dmaK(1); dmaV(0); dmaK(2); dmaV(1)
    k('s_waitcnt vmcnt(8)')
    k('s_barrier')
    phaseX(0, S0, None, True, False)
    for x in valuA(S0): k(x)
    def iteration(t, dyn_tail):
        Scur = S0 if t % 2 == 0 else S1
        Snext = S1 if t % 2 == 0 else S0
        last = (t == NT - 1)
        if t + 2 < NT: k('s_waitcnt vmcnt(4)')
        elif t + 1 < NT: k('s_waitcnt vmcnt(2)')
        else: k('s_waitcnt vmcnt(0)')
        k('s_barrier')
        if t + 3 < NT: dmaK((t + 3) % 3)
        if t + 2 < NT: dmaV((t + 2) % 3)
        phaseX((t + 1) % 3, Snext, Scur, not last, True)
        phaseY(t % 3, Snext, not last)
    k('s_mov_b32 s35, 0')
    k(f'{L("loop")}:')
    for t in range(6): iteration(t, False)
    k(f'''
    s_add_u32 s35, s35, 1
    s_cmp_lt_u32 s35, 4
    s_cbranch_scc1 {L("loop")}
    ''')
    for t in range(24, 32): iteration(t, True)
    k(f'''
    v_mov_b32 v{T+1}, v{LS}
    v_permlane32_swap_b32 v{LS}, v{T+1}
    v_add_f32 v{LS}, v{LS}, v{T+1}
    v_rcp_f32 v{T+2}, v{LS}
    v_and_b32 v{T}, 31, v0
    v_lshrrev_b32 v{T+1}, 5, v0
    s_lshl_b32 s37, s36, 8
    s_lshl_b32 s38, s34, 5
    s_add_u32 s37, s37, s38
    v_add_u32 v{T+3}, s37, v{T}
    v_lshlrev_b32 v{T+3}, 13, v{T+3}
    s_lshl_b32 s38, s33, 8
    v_lshl_add_u32 v{T+4}, v{T+1}, 3, s38
    v_add_u32 v{T+3}, v{T+3}, v{T+4}
    v_fma_f32 v{T+4}, -v{T+2}, v{LS}, 1.0
    v_fma_f32 v{T+2}, v{T+4}, v{T+2}, v{T+2}
    ''')
    for db in range(4):
        for g in range(4):
            r = O + db * 16 + g * 4
            for e in range(4):
                k(f'v_mul_f32 v{r+e}, v{T+2}, v{r+e}')
            k(f'''
            v_cvt_pk_bf16_f32 v{r}, v{r}, v{r+1}
            v_cvt_pk_bf16_f32 v{r+1}, v{r+2}, v{r+3}
            buffer_store_dwordx2 v[{r}:{r+1}], v{T+3}, s[20:23], 0 offen offset:{db*64+g*16}
            ''')
    k(f'''
    {L('end')}:
    s_endpgm
    ''')
    return k, dict(vgpr=NV, sgpr=64, grid=256, block=512, lds=6 * KSL)
```

```python
import sys
sys.path.insert(0, 'gen')
from asmlib import Kernel

KA = dict(x=0, k=8, v=16, wq=24, wo=32, bx=40, wg=48, wu=56, wd=64, c=72, wmod=80, out=88, dbg=96, ws=104)
WS_MOD = 0
WS_H1 = 0x100000
WS_X2 = 0x500000
WS_H2 = 0x900000
WS_Q = 0x1000000
WS_O = 0x2000000
WS_GU = 0x3000000
LOG2E = 0x3fb8aa3b
SCALE = 0x3db504f3

def srd(k, d, base_lo, base_hi, nbytes, off=0):
    if off:
        k(f's_add_u32 s{d}, s{base_lo}, 0x{off:x}')
        k(f's_addc_u32 s{d+1}, s{base_hi}, 0')
    else:
        k(f's_mov_b32 s{d}, s{base_lo}')
        k(f's_mov_b32 s{d+1}, s{base_hi}')
    k(f's_mov_b32 s{d+2}, 0x{nbytes:x}')
    k(f's_mov_b32 s{d+3}, 0x00020000')

def rnd(k, d, s):
    k(f'v_cvt_pk_bf16_f32 v{d}, 0, v{s}')

def gen_mod():
    k = Kernel('mod_kernel')
    k(f'''
    s_cmp_ge_u32 s2, 192
    s_cbranch_scc1 L_mod_end
    s_load_dwordx2 s[4:5], s[0:1], {KA['c']}
    s_load_dwordx2 s[6:7], s[0:1], {KA['wmod']}
    s_load_dwordx2 s[8:9], s[0:1], {KA['ws']}
    v_lshrrev_b32 v1, 2, v0
    v_and_b32 v2, 3, v0
    v_lshlrev_b32 v3, 1, v1
    s_mov_b32 s3, 12288
    v_mul_lo_u32 v4, v1, s3
    v_lshl_add_u32 v4, v2, 4, v4
    s_lshl_b32 s3, s2, 6
    v_add_u32 v4, s3, v4
    s_waitcnt lgkmcnt(0)
    ''')
    srd(k, 12, 4, 5, 2048)
    srd(k, 16, 6, 7, 1024 * 6144 * 2)
    srd(k, 20, 8, 9, 6144 * 4, WS_MOD)
    for p in range(16):
        k(f'buffer_load_ushort v{10+p}, v3, s[12:15], 0 offen offset:{p*128}')
    for p in range(16):
        k(f's_mov_b32 s24, {p*786432}')
        k(f'buffer_load_dwordx4 v[{32+4*p}:{35+4*p}], v4, s[16:19], s24 offen')
    k('s_waitcnt vmcnt(16)')
    k(f's_mov_b32 s25, 0x{LOG2E:x}')
    for p in range(16):
        x = 10 + p
        k(f'''
        v_lshlrev_b32 v{x}, 16, v{x}
        v_mul_f32 v5, s25, v{x}
        v_exp_f32 v5, -v5
        v_add_f32 v5, 1.0, v5
        v_rcp_f32 v6, v5
        v_mul_f32 v7, v{x}, v6
        v_fma_f32 v8, -v7, v5, v{x}
        v_fma_f32 v7, v8, v6, v7
        ''')
        rnd(k, x, 7)
    for i in range(8):
        k(f'v_mov_b32 v{100+i}, 0')
    k('s_mov_b32 s26, 0xffff0000')
    for p in range(16):
        k(f's_waitcnt vmcnt({15-p})')
        for i in range(4):
            d = 32 + 4 * p + i
            k(f'''
            v_lshlrev_b32 v5, 16, v{d}
            v_and_b32 v6, s26, v{d}
            v_fmac_f32 v{100+2*i}, v{10+p}, v5
            v_fmac_f32 v{101+2*i}, v{10+p}, v6
            ''')
    k(f'''
    v_lshlrev_b32 v5, 5, v0
    ds_write_b128 v5, v[100:103]
    ds_write_b128 v5, v[104:107] offset:16
    v_and_b32 v6, 31, v0
    v_lshrrev_b32 v7, 5, v0
    v_lshlrev_b32 v8, 10, v7
    v_lshl_add_u32 v8, v6, 2, v8
    s_waitcnt lgkmcnt(0)
    s_barrier
    ''')
    for r in range(8):
        k(f'ds_read_b32 v{10+r}, v8 offset:{r*128}')
    k('s_waitcnt lgkmcnt(0)')
    for r in range(1, 8):
        k(f'v_add_f32 v10, v10, v{10+r}')
    k(f'''
    v_lshlrev_b32 v8, 7, v7
    v_lshl_add_u32 v8, v6, 2, v8
    ds_write_b32 v8, v10 offset:8192
    v_lshlrev_b32 v9, 2, v6
    s_waitcnt lgkmcnt(0)
    s_barrier
    ''')
    for r in range(8):
        k(f'ds_read_b32 v{10+r}, v9 offset:{8192+r*128}')
    k('s_waitcnt lgkmcnt(0)')
    for r in range(1, 8):
        k(f'v_add_f32 v10, v10, v{10+r}')
    rnd(k, 10, 10)
    k(f'''
    s_lshl_b32 s3, s2, 7
    v_add_u32 v9, s3, v9
    v_cmp_gt_u32 vcc, 32, v0
    s_and_saveexec_b64 s[28:29], vcc
    s_cbranch_execz L_mod_end
    buffer_store_dword v10, v9, s[20:23], 0 offen
    L_mod_end:
    s_endpgm
    ''')
    return k, dict(vgpr=112, sgpr=32, grid=192, block=256, lds=16384)

def wave_sum(k, v, t):
    for off in (0x041F, 0x081F, 0x101F, 0x201F, 0x401F):
        k(f'''
        ds_swizzle_b32 v{t}, v{v} offset:0x{off:x}
        s_waitcnt lgkmcnt(0)
        v_add_f32 v{v}, v{v}, v{t}
        ''')
    k(f'''
    v_mov_b32 v{t}, v{v}
    v_permlane32_swap_b32 v{v}, v{t}
    v_add_f32 v{v}, v{v}, v{t}
    ''')

def gen_ln(name, src_from_ws, src_off, shift_idx, scale_idx, dst_off):
    k = Kernel(name)
    k(f'''
    s_cmp_ge_u32 s2, 512
    s_cbranch_scc1 L_{name}_end
    s_load_dwordx2 s[4:5], s[0:1], {KA['ws'] if src_from_ws else KA['x']}
    s_load_dwordx2 s[8:9], s[0:1], {KA['ws']}
    v_lshrrev_b32 v1, 6, v0
    v_and_b32 v2, 63, v0
    s_lshl_b32 s3, s2, 2
    v_add_u32 v1, s3, v1
    v_lshlrev_b32 v1, 11, v1
    v_lshl_add_u32 v1, v2, 4, v1
    v_lshlrev_b32 v3, 5, v2
    s_waitcnt lgkmcnt(0)
    ''')
    srd(k, 12, 4, 5, 2048 * 2048, src_off)
    srd(k, 16, 8, 9, 6144 * 4, WS_MOD)
    srd(k, 20, 8, 9, 2048 * 2048, dst_off)
    k(f'''
    buffer_load_dwordx4 v[4:7], v1, s[12:15], 0 offen
    buffer_load_dwordx4 v[8:11], v1, s[12:15], 0 offen offset:1024
    s_mov_b32 s24, {shift_idx*4096}
    s_mov_b32 s25, {scale_idx*4096}
    buffer_load_dwordx4 v[48:51], v3, s[16:19], s24 offen
    buffer_load_dwordx4 v[52:55], v3, s[16:19], s24 offen offset:16
    buffer_load_dwordx4 v[56:59], v3, s[16:19], s24 offen offset:2048
    buffer_load_dwordx4 v[60:63], v3, s[16:19], s24 offen offset:2064
    buffer_load_dwordx4 v[64:67], v3, s[16:19], s25 offen
    buffer_load_dwordx4 v[68:71], v3, s[16:19], s25 offen offset:16
    buffer_load_dwordx4 v[72:75], v3, s[16:19], s25 offen offset:2048
    buffer_load_dwordx4 v[76:79], v3, s[16:19], s25 offen offset:2064
    s_mov_b32 s26, 0xffff0000
    s_waitcnt vmcnt(8)
    ''')
    for i in range(8):
        k(f'v_lshlrev_b32 v{16+2*i}, 16, v{4+i}')
        k(f'v_and_b32 v{17+2*i}, s26, v{4+i}')
    k('v_add_f32 v12, v16, v17')
    for i in range(2, 16):
        k(f'v_add_f32 v12, v12, v{16+i}')
    wave_sum(k, 12, 13)
    k('v_mul_f32 v12, 0x3a800000, v12')
    k('v_mov_b32 v14, 0')
    for i in range(16):
        k(f'v_sub_f32 v13, v{16+i}, v12')
        k(f'v_fmac_f32 v14, v13, v13')
    wave_sum(k, 14, 13)
    k('v_mul_f32 v14, 0x3a800000, v14')
    rnd(k, 12, 12)
    rnd(k, 14, 14)
    k('v_add_f32 v14, 0x3727c5ac, v14')
    rnd(k, 14, 14)
    k('v_sqrt_f32 v14, v14')
    rnd(k, 14, 14)
    k('v_rcp_f32 v15, v14')
    k('s_waitcnt vmcnt(0)')
    for i in range(16):
        x = 16 + i
        k(f'v_sub_f32 v{x}, v{x}, v12')
        rnd(k, x, x)
        k(f'''
        v_mul_f32 v13, v{x}, v15
        v_fma_f32 v32, -v13, v14, v{x}
        v_fma_f32 v13, v32, v15, v13
        ''')
        rnd(k, 13, 13)
        k(f'v_add_f32 v32, 1.0, v{64+i}')
        rnd(k, 32, 32)
        k(f'v_mul_f32 v13, v13, v32')
        rnd(k, 13, 13)
        k(f'v_add_f32 v{x}, v13, v{48+i}')
    for i in range(8):
        k(f'v_cvt_pk_bf16_f32 v{4+i}, v{16+2*i}, v{17+2*i}')
    k(f'''
    buffer_store_dwordx4 v[4:7], v1, s[20:23], 0 offen
    buffer_store_dwordx4 v[8:11], v1, s[20:23], 0 offen offset:1024
    L_{name}_end:
    s_endpgm
    ''')
    return k, dict(vgpr=80, sgpr=32, grid=512, block=256, lds=0)

STG = 49152
def gen_gemm(name, cfg):
    BM, NBS, U, K = cfg['BM'], cfg['NBS'], cfg['U'], cfg['K']
    MB = BM // 32; NB = 2 * NBS; S = 2 * U
    NS = K // (64 * U)
    lda = cfg['lda']; ldb = cfg['ldb']; ldo = cfg['ldo']
    MT, NT = cfg['MT'], cfg['NT']
    nwg = MT * NT
    epi = cfg['epi']
    k = Kernel(name)
    L = lambda s: f'L_{name}_{s}'
    k(f'''
    s_cmp_ge_u32 s2, {nwg}
    s_cbranch_scc1 {L('end')}
    s_load_dwordx2 s[4:5], s[0:1], {KA['ws']}
    s_load_dwordx2 s[6:7], s[0:1], {cfg['B'][0]}
    s_load_dwordx2 s[40:41], s[0:1], {cfg['B'][-1]}
    s_load_dwordx2 s[42:43], s[0:1], {KA['x']}
    s_load_dwordx2 s[44:45], s[0:1], {KA['out']}
    v_lshrrev_b32 v1, 6, v0
    v_and_b32 v0, 63, v0
    s_nop 0
    v_readfirstlane_b32 s34, v1
    s_and_b32 s3, s2, 7
    s_lshr_b32 s35, s2, 3
    ''')
    gx = MT // 4
    gsh = gx.bit_length() - 1
    k(f'''
    s_and_b32 s32, s3, {gx-1}
    s_lshl_b32 s32, s32, 2
    s_and_b32 s36, s35, 3
    s_add_u32 s32, s32, s36
    s_lshr_b32 s33, s3, {gsh}
    s_mul_i32 s33, s33, {NT//(8//gx)}
    s_lshr_b32 s36, s35, 2
    s_add_u32 s33, s33, s36
    s_mul_i32 s32, s32, {BM}
    s_waitcnt lgkmcnt(0)
    ''')
    srd(k, 8, 4, 5, 2048 * lda, cfg['Aoff'])
    srd(k, 12, 6, 7, K * ldb)
    srd(k, 16, 40, 41, K * ldb)
    k(f'''
    s_cmp_ge_u32 s34, 4
    s_cbranch_scc1 {L('loader')}
    ''')
    ACC = 4
    F0 = ACC + MB * NB * 4
    FS = (MB + NB) * 4
    def fA(st, mb): return F0 + st * FS + mb * 4
    def fB(st, nb): return F0 + st * FS + MB * 4 + nb * 4
    AD = F0 + 2 * FS
    vA = [AD, AD + 1]; vB = [AD + 2, AD + 3]; vAb = [AD + 4, AD + 5]; vBb = [AD + 6, AD + 7]
    T0 = AD + 8
    k(f'''
    s_and_b32 s36, s34, 1
    s_lshr_b32 s37, s34, 1
    v_and_b32 v{T0}, 15, v0
    v_lshrrev_b32 v{T0+1}, 4, v0
    v_lshrrev_b32 v{T0+2}, 1, v{T0}
    v_xor_b32 v{T0+2}, v{T0+1}, v{T0+2}
    v_lshlrev_b32 v{T0+2}, 4, v{T0+2}
    v_lshl_add_u32 v{T0+2}, v{T0}, 7, v{T0+2}
    s_mul_i32 s38, s36, {(BM//2)*128}
    v_add_u32 v{vAb[0]}, s38, v{T0+2}
    v_xor_b32 v{vAb[1]}, 64, v{vAb[0]}
    ''')
    k(f'''
    v_lshrrev_b32 v{T0+2}, 3, v{T0}
    v_and_b32 v{T0+3}, 1, v{T0+1}
    v_lshl_or_b32 v{T0+2}, v{T0+3}, 1, v{T0+2}
    s_lshl_b32 s38, s37, 1
    v_xor_b32 v{T0+2}, s38, v{T0+2}
    v_lshlrev_b32 v{T0+2}, 5, v{T0+2}
    v_and_b32 v{T0+3}, 3, v{T0}
    v_lshl_add_u32 v{T0+2}, v{T0+3}, 3, v{T0+2}
    v_lshrrev_b32 v{T0+3}, 2, v{T0}
    v_lshl_add_u32 v{T0+3}, v{T0+1}, 3, v{T0+3}
    v_lshl_add_u32 v{vBb[0]}, v{T0+3}, 7, v{T0+2}
    v_xor_b32 v{vBb[1]}, 32, v{vBb[0]}
    v_mov_b32 v{vA[0]}, v{vAb[0]}
    v_mov_b32 v{vA[1]}, v{vAb[1]}
    v_mov_b32 v{vB[0]}, v{vBb[0]}
    v_mov_b32 v{vB[1]}, v{vBb[1]}
    ''')
    for i in range(MB * NB * 4):
        k(f'v_mov_b32 v{ACC+i}, 0')
    def a_off(u): return u * BM * 128
    def b_off(u, sub): return 32768 + (u * NBS + sub) * 8192
    def reads(s, st):
        u, sb = s >> 1, s & 1
        out = []
        for mb in range(MB):
            out.append(f'ds_read_b128 v[{fA(st,mb)}:{fA(st,mb)+3}], v{vA[sb]} offset:{a_off(u)+mb*2048}')
        for nb in range(NB):
            sub, j = nb >> 1, nb & 1
            for h in range(2):
                out.append(f'ds_read_b64_tr_b16 v[{fB(st,nb)+2*h}:{fB(st,nb)+2*h+1}], v{vB[j]} offset:{b_off(u,sub)+(32*sb+4*h)*128}')
        return out
    def mfmas(st):
        out = []
        for mb in range(MB):
            for nb in range(NB):
                a = ACC + (mb * NB + nb) * 4
                out.append(f'v_mfma_f32_16x16x32_bf16 v[{a}:{a+3}], v[{fB(st,nb)}:{fB(st,nb)+3}], v[{fA(st,mb)}:{fA(st,mb)+3}], v[{a}:{a+3}]')
        return out
    def interleave(mf, rd, pre=()):
        out = list(pre)
        n = len(mf)
        ri = 0
        for i, m in enumerate(mf):
            out.append(m)
            want = min(len(rd), ((i + 1) * len(rd) * 4 + 3 * n - 1) // (3 * n))
            while ri < want:
                out.append(rd[ri]); ri += 1
        out += rd[ri:]
        return out
    k(f'''
    s_mov_b32 s39, 0
    s_mov_b32 s35, 0
    s_barrier
    ''')
    for r in reads(0, 0): k(r)
    def stage_body(last):
        for s in range(S):
            k('s_waitcnt lgkmcnt(0)')
            if s < S - 1:
                for x in interleave(mfmas(s & 1), reads(s + 1, (s + 1) & 1)): k(x)
            elif not last:
                k(f'''
                s_barrier
                s_add_u32 s39, s39, {STG}
                s_cmp_ge_u32 s39, {3*STG}
                s_cselect_b32 s39, 0, s39
                v_add_u32 v{vA[0]}, s39, v{vAb[0]}
                v_add_u32 v{vA[1]}, s39, v{vAb[1]}
                v_add_u32 v{vB[0]}, s39, v{vBb[0]}
                v_add_u32 v{vB[1]}, s39, v{vBb[1]}
                ''')
                for x in interleave(mfmas(s & 1), reads(0, 0)): k(x)
            else:
                epi_pre()
                for x in mfmas(s & 1): k(x)
    E0 = F0
    vO = T0
    def epi_pre():
        ncols = 64 * (NBS if epi == 'q' else 1)
        k(f'''
        v_and_b32 v{T0+1}, 15, v0
        v_lshrrev_b32 v{T0+2}, 4, v0
        s_mul_i32 s46, s36, {BM//2}
        s_add_u32 s46, s46, s32
        v_add_u32 v{T0+1}, s46, v{T0+1}
        s_mov_b32 s46, {ldo}
        v_mul_lo_u32 v{T0+1}, v{T0+1}, s46
        s_mul_i32 s46, s33, {ncols*2}
        s_lshl_b32 s47, s37, 6
        s_add_u32 s46, s46, s47
        v_lshl_add_u32 v{T0+2}, v{T0+2}, 3, s46
        v_add_u32 v{vO}, v{T0+1}, v{T0+2}
        ''')
        if epi == 'res':
            k(f'v_lshlrev_b32 v{T0+3}, 1, v{T0+2}')
            k(f's_mov_b32 s46, {cfg["gidx"]*4096}')
            for j in range(NB):
                k(f'buffer_load_dwordx4 v[{E0+j*4}:{E0+j*4+3}], v{T0+3}, s[28:31], s46 offen offset:{j*64}')
            for mb in range(MB):
                k(f's_mov_b32 s46, {mb*16*ldo}')
                for j in range(NB):
                    r = E0 + NB * 4 + (mb * NB + j) * 2
                    k(f'buffer_load_dwordx2 v[{r}:{r+1}], v{vO}, s[24:27], s46 offen offset:{j*32}')
    if epi == 'q':
        srd(k, 20, 4, 5, 2048 * ldo, cfg['Ooff'])
    elif epi == 'gu':
        srd(k, 20, 4, 5, 2048 * ldo, cfg['Ooff'])
    else:
        if cfg['out_is_out']:
            srd(k, 20, 44, 45, 2048 * ldo)
        else:
            srd(k, 20, 4, 5, 2048 * ldo, cfg['Ooff'])
        if cfg['res_from_ws']:
            srd(k, 24, 4, 5, 2048 * 2048, cfg['Roff'])
        else:
            srd(k, 24, 42, 43, 2048 * 2048)
        srd(k, 28, 4, 5, 6144 * 4, WS_MOD)
    k(f'{L("cloop")}:')
    stage_body(False)
    k(f'''
    s_add_u32 s35, s35, 1
    s_cmp_lt_u32 s35, {NS-1}
    s_cbranch_scc1 {L("cloop")}
    ''')
    stage_body(True)
    t = T0 + 4
    if epi == 'q':
        for mb in range(MB):
            k(f's_mov_b32 s46, {mb*16*ldo}')
            for nb in range(NB):
                a = ACC + (mb * NB + nb) * 4
                sub, j = nb >> 1, nb & 1
                k(f'''
                v_cvt_pk_bf16_f32 v{a}, v{a}, v{a+1}
                v_cvt_pk_bf16_f32 v{a+1}, v{a+2}, v{a+3}
                buffer_store_dwordx2 v[{a}:{a+1}], v{vO}, s[20:23], s46 offen offset:{sub*128+j*32}
                ''')
    elif epi == 'gu':
        k(f's_mov_b32 s47, 0x{LOG2E:x}')
        for mb in range(MB):
            k(f's_mov_b32 s46, {mb*16*ldo}')
            for j in range(2):
                g = ACC + (mb * NB + j) * 4
                u = ACC + (mb * NB + 2 + j) * 4
                for e in range(4):
                    rnd(k, g + e, g + e)
                    k(f'''
                    v_mul_f32 v{t}, s47, v{g+e}
                    v_exp_f32 v{t}, -v{t}
                    v_add_f32 v{t}, 1.0, v{t}
                    v_rcp_f32 v{t+1}, v{t}
                    v_mul_f32 v{t+2}, v{g+e}, v{t+1}
                    v_fma_f32 v{t+3}, -v{t+2}, v{t}, v{g+e}
                    v_fma_f32 v{t+2}, v{t+3}, v{t+1}, v{t+2}
                    ''')
                    rnd(k, t + 2, t + 2)
                    rnd(k, u + e, u + e)
                    k(f'v_mul_f32 v{g+e}, v{t+2}, v{u+e}')
                k(f'''
                v_cvt_pk_bf16_f32 v{g}, v{g}, v{g+1}
                v_cvt_pk_bf16_f32 v{g+1}, v{g+2}, v{g+3}
                buffer_store_dwordx2 v[{g}:{g+1}], v{vO}, s[20:23], s46 offen offset:{j*32}
                ''')
    else:
        k('s_mov_b32 s47, 0xffff0000')
        k('s_waitcnt vmcnt(0)')
        for mb in range(MB):
            k(f's_mov_b32 s46, {mb*16*ldo}')
            for j in range(NB):
                a = ACC + (mb * NB + j) * 4
                r = E0 + NB * 4 + (mb * NB + j) * 2
                for e in range(4):
                    rnd(k, a + e, a + e)
                    k(f'v_mul_f32 v{a+e}, v{a+e}, v{E0+j*4+e}')
                    rnd(k, a + e, a + e)
                    if e & 1:
                        k(f'v_and_b32 v{t}, s47, v{r+(e>>1)}')
                    else:
                        k(f'v_lshlrev_b32 v{t}, 16, v{r+(e>>1)}')
                    k(f'v_add_f32 v{a+e}, v{a+e}, v{t}')
                k(f'''
                v_cvt_pk_bf16_f32 v{a}, v{a}, v{a+1}
                v_cvt_pk_bf16_f32 v{a+1}, v{a+2}, v{a+3}
                buffer_store_dwordx2 v[{a}:{a+1}], v{vO}, s[20:23], s46 offen offset:{j*32}
                ''')
    k('s_endpgm')
    nv_compute = T0 + 8
    k(f'{L("loader")}:')
    k(f'''
    s_sub_u32 s34, s34, 4
    s_and_b32 s36, s34, 1
    s_lshr_b32 s37, s34, 1
    v_lshrrev_b32 v1, 3, v0
    v_and_b32 v2, 7, v0
    v_lshrrev_b32 v3, 4, v0
    ''')
    if U == 1:
        k('s_lshl_b32 s46, s34, 6')
        k('s_mov_b32 s47, 0')
    else:
        k('s_lshl_b32 s46, s36, 6')
        k('s_lshl_b32 s47, s37, 7')
    k(f'''
    s_add_u32 s46, s46, s32
    s_mov_b32 s48, {lda}
    ''')
    for a in range(8):
        k(f'''
        v_add_u32 v4, {(4*a)&7}, v3
        v_and_b32 v4, 7, v4
        v_xor_b32 v4, v2, v4
        v_lshlrev_b32 v4, 4, v4
        v_add_u32 v5, s46, v1
        v_add_u32 v5, {8*a}, v5
        v_mul_lo_u32 v5, v5, s48
        v_add3_u32 v{8+a}, v5, v4, s47
        ''')
    if U == 1:
        k(f'''
        s_cmp_eq_u32 s37, 0
        s_cselect_b32 s12, s12, s16
        s_cselect_b32 s13, s13, s17
        s_lshl_b32 s46, s36, 5
        ''')
        if epi == 'q':
            k(f'''
            s_mul_i32 s47, s33, 256
            s_lshl_b32 s49, s37, 7
            s_add_u32 s47, s47, s49
            ''')
        else:
            k('s_mul_i32 s47, s33, 128')
    else:
        k(f'''
        s_lshl_b32 s46, s36, 5
        s_lshl_b32 s49, s37, 6
        s_add_u32 s46, s46, s49
        s_mul_i32 s47, s33, 128
        ''')
    k(f's_mov_b32 s48, {ldb}')
    for b in range(4):
        k(f'''
        v_and_b32 v4, 1, v3
        v_or_b32 v4, {(b&1)<<1}, v4
        v_lshrrev_b32 v5, 1, v2
        v_xor_b32 v4, v5, v4
        v_lshlrev_b32 v4, 5, v4
        v_and_b32 v5, 1, v2
        v_lshl_add_u32 v4, v5, 4, v4
        v_add_u32 v5, s46, v1
        v_add_u32 v5, {8*b}, v5
        v_mul_lo_u32 v5, v5, s48
        v_add3_u32 v{16+b}, v5, v4, s47
        ''')
    k(f'''
    s_lshl_b32 s50, s34, 13
    s_lshl_b32 s51, s34, 12
    s_add_u32 s51, s51, 32768
    s_mov_b32 s52, 0
    s_mov_b32 s53, 0
    s_mov_b32 s39, 0
    ''')
    def issue():
        for a in range(8):
            k(f'''
            s_add_u32 s54, s39, s50
            s_add_u32 m0, s54, {a*1024}
            s_nop 0
            buffer_load_dwordx4 v{8+a}, s[8:11], s52 offen lds
            ''')
        for b in range(4):
            k(f'''
            s_add_u32 s54, s39, s51
            s_add_u32 m0, s54, {b*1024}
            s_nop 0
            buffer_load_dwordx4 v{16+b}, s[12:15], s53 offen lds
            ''')
        k(f'''
        s_add_u32 s52, s52, {128*U}
        s_add_u32 s53, s53, {64*U*ldb}
        s_add_u32 s39, s39, {STG}
        s_cmp_ge_u32 s39, {3*STG}
        s_cselect_b32 s39, 0, s39
        ''')
    issue(); issue(); issue()
    k(f'''
    s_waitcnt vmcnt(24)
    s_barrier
    s_mov_b32 s35, 0
    {L("lloop")}:
    s_waitcnt vmcnt(12)
    s_barrier
    ''')
    issue()
    k(f'''
    s_add_u32 s35, s35, 1
    s_cmp_lt_u32 s35, {NS-3}
    s_cbranch_scc1 {L("lloop")}
    s_waitcnt vmcnt(12)
    s_barrier
    s_waitcnt vmcnt(0)
    s_barrier
    {L("end")}:
    s_endpgm
    ''')
    return k, dict(vgpr=max(nv_compute, 24), sgpr=64, grid=nwg, block=512, lds=3 * STG)

def build(kernels, path):
    hdr = open('adaLN_cond__gqa_block_cached__swiglu_ffn__prompt.s.ref').read().split('; Override launch')[0]
    out = [hdr.rstrip('\n')]
    for k, m in kernels:
        out.append(f'; @launch kernel={k.name} grid=({m["grid"]},1,1) block=({m["block"]},1,1) lds={m["lds"]}')
    out.append('.amdgcn_target "amdgcn-amd-amdhsa--gfx950"')
    out.append('.text')
    seen = set()
    for k, m in kernels:
        if k.name in seen: continue
        seen.add(k.name)
        k.pad()
        out.append(f'.globl {k.name}\n.p2align 8\n.type {k.name},@function\n{k.name}:')
        out.append(k.text())
    out.append('.section .rodata,"a"')
    seen = set()
    for k, m in kernels:
        if k.name in seen: continue
        seen.add(k.name)
        v = (m['vgpr'] + 7) // 8 * 8
        out.append(f'''.p2align 6
.amdhsa_kernel {k.name}
  .amdhsa_next_free_vgpr {v}
  .amdhsa_next_free_sgpr {m['sgpr']}
  .amdhsa_accum_offset {(v+3)//4*4}
  .amdhsa_group_segment_fixed_size 0
  .amdhsa_kernarg_size 112
  .amdhsa_user_sgpr_count 2
  .amdhsa_user_sgpr_kernarg_segment_ptr 1
  .amdhsa_system_sgpr_workgroup_id_x 1
.end_amdhsa_kernel''')
    open(path, 'w').write('\n'.join(out) + '\n')

if __name__ == '__main__':
    from attn import gen_attn
    ks = []
    ks.append(gen_mod())
    ks.append(gen_ln('ln1_kernel', False, 0, 0, 1, WS_H1))
    ks.append(gen_gemm('qproj_kernel', dict(BM=256, NBS=2, U=1, K=1024, lda=2048, Aoff=WS_H1, B=[KA['wq'], KA['wq']], ldb=8192,
                                            ldo=8192, Ooff=WS_Q, MT=8, NT=32, epi='q')))
    ks.append(gen_attn())
    ks.append(gen_gemm('wo_kernel', dict(BM=128, NBS=1, U=2, K=4096, lda=8192, Aoff=WS_O, B=[KA['wo']], ldb=2048, ldo=2048,
                                         Ooff=WS_X2, MT=16, NT=16, epi='res', gidx=2, out_is_out=False, res_from_ws=False)))
    ks.append(gen_ln('ln2_kernel', True, WS_X2, 3, 4, WS_H2))
    ks.append(gen_gemm('gu_kernel', dict(BM=256, NBS=2, U=1, K=1024, lda=2048, Aoff=WS_H2, B=[KA['wg'], KA['wu']], ldb=7168,
                                         ldo=7168, Ooff=WS_GU, MT=8, NT=56, epi='gu')))
    ks.append(gen_gemm('down_kernel', dict(BM=128, NBS=1, U=2, K=3584, lda=7168, Aoff=WS_GU, B=[KA['wd']], ldb=2048, ldo=2048,
                                           MT=16, NT=16, epi='res', gidx=5, out_is_out=True, res_from_ws=True, Roff=WS_X2)))
    build(ks, 'adaLN_cond__gqa_block_cached__swiglu_ffn__prompt.s')
```

```python
from asmlib import Kernel
from gen import *
import os
XF = os.environ.get('XF', '')

def gen_attn():
    name = 'attn_kernel'
    k = Kernel(name)
    L = lambda s: f'L_{name}_{s}'
    NT = 32
    KSL = 16384
    VB = 4 * KSL
    Q = 4
    S = 36
    O = 68
    P = 132
    KF = 148
    VF = 164
    AK = 180
    AV = 188
    DM = 196
    M = 200; LS = 201; AL = 202; MN = 203; T = 204
    SUM = 212
    CL = 216; CS = 217
    CT = 218
    NV = 220
    k(f'''
    s_cmp_ge_u32 s2, 256
    s_cbranch_scc1 {L('end')}
    s_load_dwordx2 s[4:5], s[0:1], {KA['ws']}
    s_load_dwordx2 s[6:7], s[0:1], {KA['k']}
    s_load_dwordx2 s[40:41], s[0:1], {KA['v']}
    v_lshrrev_b32 v{T}, 6, v0
    v_and_b32 v0, 63, v0
    s_nop 0
    v_readfirstlane_b32 s34, v{T}
    s_and_b32 s3, s2, 7
    s_lshr_b32 s35, s2, 3
    s_lshr_b32 s32, s3, 1
    s_lshl_b32 s33, s3, 2
    s_and_b32 s36, s35, 3
    s_add_u32 s33, s33, s36
    s_lshr_b32 s36, s35, 2
    s_lshr_b32 s49, s34, 2
    s_waitcnt lgkmcnt(0)
    ''')
    if 'stamp' in XF:
        k('''
        s_memtime s[60:61]
        s_memrealtime s[62:63]
        s_load_dwordx2 s[56:57], s[0:1], 96
        s_waitcnt lgkmcnt(0)
        s_mov_b32 s72, s60
        s_mov_b32 s70, 0
        s_mov_b32 s71, 0
        s_mov_b32 s77, 0
        ''')
    srd(k, 8, 4, 5, 2048 * 8192, WS_Q)
    srd(k, 20, 4, 5, 2048 * 8192, WS_O)
    k(f'''
    s_cmp_eq_u32 s49, 0
    s_cselect_b32 s6, s40, s6
    s_cselect_b32 s7, s41, s7
    s_lshl_b32 s37, s32, 19
    s_add_u32 s12, s6, s37
    s_addc_u32 s13, s7, 0
    s_mov_b32 s14, 0x80000
    s_mov_b32 s15, 0x00020000
    ''')
    k(f'''
    v_and_b32 v{T}, 31, v0
    v_lshrrev_b32 v{T+1}, 5, v0
    s_lshl_b32 s37, s36, 8
    s_lshl_b32 s38, s34, 5
    s_add_u32 s37, s37, s38
    v_add_u32 v{T+2}, s37, v{T}
    v_lshlrev_b32 v{T+2}, 13, v{T+2}
    s_lshl_b32 s38, s33, 8
    v_lshl_add_u32 v{T+3}, v{T+1}, 4, s38
    v_add_u32 v{T+2}, v{T+2}, v{T+3}
    ''')
    for s in range(8):
        k(f'buffer_load_dwordx4 v[{Q+4*s}:{Q+4*s+3}], v{T+2}, s[8:11], 0 offen offset:{s*32}')
    k(f'''
    v_lshrrev_b32 v{T+3}, 4, v0
    v_and_b32 v{T+4}, 15, v0
    s_and_b32 s37, s34, 3
    s_lshl_b32 s37, s37, 4
    s_cmp_eq_u32 s49, 0
    s_cselect_b64 s[50:51], -1, 0
    ''')
    for j in range(4):
        k(f'''
        v_add_u32 v{T+5}, s37, v{T+3}
        v_add_u32 v{T+5}, {4*j}, v{T+5}
        v_and_b32 v{T+6}, 15, v{T+5}
        v_lshlrev_b32 v{T+7}, 2, v{T+3}
        v_cndmask_b32 v{T+6}, v{T+6}, v{T+7}, s[50:51]
        v_xor_b32 v{T+6}, v{T+4}, v{T+6}
        v_lshlrev_b32 v{T+6}, 4, v{T+6}
        v_lshl_add_u32 v{DM+j}, v{T+5}, 8, v{T+6}
        ''')
    k(f'''
    v_and_b32 v{T+3}, 1, v{T}
    v_xor_b32 v{T+3}, v{T+1}, v{T+3}
    v_lshlrev_b32 v{T+3}, 4, v{T+3}
    v_lshl_add_u32 v{T+3}, v{T}, 8, v{T+3}
    v_bfe_u32 v{T+4}, v{T}, 1, 3
    ''')
    for s in range(8):
        k(f'''
        v_xor_b32 v{T+5}, {s}, v{T+4}
        v_lshl_add_u32 v{AK+s}, v{T+5}, 5, v{T+3}
        ''')
    k(f'''
    v_and_b32 v{T+3}, 15, v0
    v_lshrrev_b32 v{T+4}, 2, v{T+3}
    v_lshl_add_u32 v{T+5}, v{T+1}, 2, v{T+4}
    v_lshlrev_b32 v{T+5}, 8, v{T+5}
    v_bfe_u32 v{T+6}, v0, 4, 1
    v_lshl_add_u32 v{T+5}, v{T+6}, 5, v{T+5}
    v_and_b32 v{T+6}, 3, v{T+3}
    v_lshl_add_u32 v{T+5}, v{T+6}, 3, v{T+5}
    v_add_u32 v{T+5}, {VB}, v{T+5}
    ''')
    for db in range(4):
        k(f'''
        v_xor_b32 v{T+6}, {db}, v{T+4}
        v_lshl_add_u32 v{AV+db}, v{T+6}, 6, v{T+5}
        ''')
    for i in range(64):
        k(f'v_mov_b32 v{O+i}, 0')
    k(f'''
    v_mov_b32 v{M}, 0xff800000
    v_mov_b32 v{LS}, 0
    v_mov_b32 v{CL}, 0x{LOG2E:x}
    v_mov_b32 v{CS}, 0x{SCALE:x}
    v_mov_b32 v{CT}, 0x41800000
    s_and_b32 s46, s34, 3
    s_lshl_b32 s46, s46, 12
    s_cmp_eq_u32 s49, 0
    s_cselect_b32 s37, {VB}, 0
    s_add_u32 s46, s46, s37
    s_mov_b32 s47, 0
    s_lshl_b32 s53, s49, 15
    ''')
    def dma(slot):
        for j in range(4):
            k(f'''
            s_add_u32 m0, s46, {slot*KSL + j*1024}
            s_nop 0
            buffer_load_dwordx4 v{DM+j}, s[12:15], s47 offen lds
            ''')
        k('s_add_u32 s47, s47, 16384')
    def kread(slot, n):
        kb, s = n >> 3, n & 7
        r = KF + (n & 3) * 4
        return [f'ds_read_b128 v[{r}:{r+3}], v{AK+s} offset:{slot*KSL + kb*8192}']
    def qk(n):
        kb, s = n >> 3, n & 7
        r = KF + (n & 3) * 4
        d = S + kb * 16
        c = '0' if s == 0 else f'v[{d}:{d+15}]'
        return f'v_mfma_f32_32x32x16_bf16 v[{d}:{d+15}], v[{r}:{r+3}], v[{Q+4*s}:{Q+4*s+3}], {c}'
    def vread(slot, n):
        db, j = n >> 2, n & 3
        r = VF + (n & 3) * 4
        return [f'ds_read_b64_tr_b16 v[{r}:{r+1}], v{AV+db} offset:{slot*KSL + (16*j)*256}',
                f'ds_read_b64_tr_b16 v[{r+2}:{r+3}], v{AV+db} offset:{slot*KSL + (16*j+8)*256}']
    def pv(n):
        db, j = n >> 2, n & 3
        r = VF + (n & 3) * 4
        d = O + db * 16
        return f'v_mfma_f32_32x32x16_bf16 v[{d}:{d+15}], v[{r}:{r+3}], v[{P+4*j}:{P+4*j+3}], v[{d}:{d+15}]'
    def valuR():
        o = []
        for b in range(0, 32, 8):
            for i in range(b, b + 8): o.append(f'v_cvt_pk_bf16_f32 v{S+i}, 0, v{S+i}')
            for i in range(b, b + 8): o.append(f'v_mul_f32 v{S+i}, v{CS}, v{S+i}')
            for i in range(b, b + 8): o.append(f'v_cvt_pk_bf16_f32 v{S+i}, 0, v{S+i}')
        for st in range(3):
            for c in range(4):
                b = S + 8 * c
                if st == 0: o.append(f'v_max3_f32 v{T+c}, v{b}, v{b+1}, v{b+2}')
                else: o.append(f'v_max3_f32 v{T+c}, v{T+c}, v{b+1+2*st}, v{b+2+2*st}')
        o.append(f'v_max3_f32 v{T}, v{T}, v{S+7}, v{S+15}')
        o.append(f'v_max3_f32 v{T+2}, v{T+2}, v{S+23}, v{S+31}')
        o.append(f'v_max3_f32 v{T}, v{T}, v{T+1}, v{T+2}')
        o.append(f'v_max_f32 v{T}, v{T}, v{T+3}')
        return o
    def valu():
        o = []
        o.append(f'v_mov_b32 v{T+1}, v{T}')
        o.append(f'v_permlane32_swap_b32 v{T}, v{T+1}')
        o.append(f'v_max_f32 v{T}, v{T}, v{T+1}')
        o.append(f'v_sub_f32 v{T+1}, v{T}, v{M}')
        o.append(f'v_cmp_lt_f32 vcc, v{CT}, v{T+1}')
        valu.cnt += 1
        lab = L('nr%d' % valu.cnt)
        o.append(f's_cbranch_vccz {lab}')
        o.append(f'v_max_f32 v{T}, v{T}, v{M}')
        o.append(f'v_mul_f32 v{MN}, v{CL}, v{T}')
        o.append(f'v_fma_f32 v{T+1}, v{M}, v{CL}, -v{MN}')
        o.append(f'v_exp_f32 v{AL}, v{T+1}')
        o.append(f'v_mov_b32 v{M}, v{T}')
        o.append(f'v_mul_f32 v{LS}, v{AL}, v{LS}')
        for i in range(64): o.append(f'v_mul_f32 v{O+i}, v{AL}, v{O+i}')
        o.append(f'{lab}:')
        for b in range(0, 32, 8):
            for i in range(b, b + 8): o.append(f'v_fma_f32 v{S+i}, v{S+i}, v{CL}, -v{MN}')
            for i in range(b, b + 8): o.append(f'v_exp_f32 v{S+i}, v{S+i}')
            if b >= 8:
                for i in range(b - 8, b):
                    c = i & 3
                    if i < 4: o.append(f'v_mov_b32 v{SUM+c}, v{S+i}')
                    else: o.append(f'v_add_f32 v{SUM+c}, v{SUM+c}, v{S+i}')
                for i in range(b - 8, b, 2): o.append(f'v_cvt_pk_bf16_f32 v{P+(i>>1)}, v{S+i}, v{S+i+1}')
        for i in range(24, 32):
            o.append(f'v_add_f32 v{SUM+(i&3)}, v{SUM+(i&3)}, v{S+i}')
        for i in range(24, 32, 2): o.append(f'v_cvt_pk_bf16_f32 v{P+(i>>1)}, v{S+i}, v{S+i+1}')
        o.append(f'v_add_f32 v{SUM}, v{SUM}, v{SUM+1}')
        o.append(f'v_add_f32 v{SUM+2}, v{SUM+2}, v{SUM+3}')
        o.append(f'v_add_f32 v{SUM}, v{SUM}, v{SUM+2}')
        o.append(f'v_add_f32 v{LS}, v{LS}, v{SUM}')
        return o
    valu.cnt = 0
    def rescale(db):
        return []
        return [f'v_mul_f32 v{O+db*16+i}, v{AL}, v{O+db*16+i}' for i in range(16)]

    PF = 4
    def mlist(kidx):
        seq = []
        if kidx < NT:
            for n in range(16): seq.append((qk(n), kread(kidx % 4, n), ('qk', n)))
        if kidx >= 1:
            for n in range(16): seq.append((pv(n), vread((kidx - 1) % 4, n), ('pv', n)))
        return seq
    def prefetch(kidx):
        for (m, rd, tag) in mlist(kidx)[:PF]:
            for x in rd: k(x)
    def tick(acc):
        if 'phase' not in XF: return
        k(f'''
        s_memtime s[74:75]
        s_waitcnt lgkmcnt(0)
        s_sub_u32 s76, s74, s72
        s_add_u32 s{acc}, s{acc}, s76
        s_mov_b32 s72, s74
        ''')
    def mphase(kidx, prefetched):
        tick(77)
        if 'noprio' not in XF: k('s_setprio 3')
        _mphase(kidx, prefetched)
        if 'noprio' not in XF: k('s_setprio 0')
        tick(70)
    def _mphase(kidx, prefetched):
        seq = mlist(kidx)
        if not prefetched: prefetch(kidx)
        n = len(seq)
        vr = valuR()
        for i, (m, rd, tag) in enumerate(seq):
            if tag[0] == 'pv' and tag[1] == 0:
                for x in rescale(0): k(x)
            cnt = sum(len(seq[j][1]) for j in range(i + 1, min(i + PF, n)))
            k(f's_waitcnt lgkmcnt({cnt})')
            k(m)
            if i + PF < n:
                for x in seq[i + PF][1]: k(x)
            if 1 <= kidx < NT and i in (1, 5, 9, 13):
                j = (i - 1) // 4
                if j == 0:
                    k(f'''
                    s_xor_b32 s52, s53, {((kidx + 1) % 4) * KSL}
                    s_add_u32 s52, s52, s46
                    ''')
                k(f'''
                s_add_u32 m0, s52, {j*1024}
                s_nop 0
                buffer_load_dwordx4 v{DM+j}, s[12:15], s47 offen lds
                ''')
                if j == 3: k('s_add_u32 s47, s47, 16384')
            if tag[0] == 'pv' and kidx < NT:
                lo = tag[1] * len(vr) // 16; hi = (tag[1] + 1) * len(vr) // 16
                for x in vr[lo:hi]: k(x)
        if kidx == 0:
            for x in vr: k(x)
    def vphase(kidx):
        dma_slot = None
        va = valu()
        tick(77)
        for x in va: k(x)
        prefetch(kidx + 1)
        tick(71)
        k('s_waitcnt vmcnt(4)')
        k('s_barrier')
    vphase.cnt = 0

    dma(0); dma(1)
    k(f'''
    s_cmp_eq_u32 s49, 0
    s_cbranch_scc1 {L("g0")}
    ''')
    dma(2); dma(3)
    k(f'''
    s_waitcnt vmcnt(8)
    s_barrier
    s_barrier
    s_branch {L("go")}
    {L("g0")}:
    s_waitcnt vmcnt(4)
    s_barrier
    {L("go")}:
    ''')
    if 'marks' in XF:
        k('s_memtime s[80:81]\ns_waitcnt lgkmcnt(0)')
    mphase(0, False)
    k('s_barrier')
    vphase(0)
    k('s_mov_b32 s35, 0')
    k(f'{L("loop")}:')
    for kk in range(1, 5):
        mphase(kk, True)
        k('s_barrier')
        vphase(kk)
    k(f'''
    s_add_u32 s35, s35, 1
    s_cmp_lt_u32 s35, 7
    s_cbranch_scc1 {L("loop")}
    ''')
    for kk in range(29, 32):
        mphase(kk, True)
        k('s_barrier')
        vphase(kk)
    mphase(32, True)
    if 'marks' in XF:
        k('s_memtime s[82:83]\ns_waitcnt lgkmcnt(0)')
    k(f'''
    s_cmp_lg_u32 s49, 0
    s_cbranch_scc1 {L("fin")}
    s_barrier
    {L("fin")}:
    v_mov_b32 v{T+1}, v{LS}
    v_permlane32_swap_b32 v{LS}, v{T+1}
    v_add_f32 v{LS}, v{LS}, v{T+1}
    v_rcp_f32 v{T+2}, v{LS}
    v_and_b32 v{T}, 31, v0
    v_lshrrev_b32 v{T+1}, 5, v0
    s_lshl_b32 s37, s36, 8
    s_lshl_b32 s38, s34, 5
    s_add_u32 s37, s37, s38
    v_add_u32 v{T+3}, s37, v{T}
    v_lshlrev_b32 v{T+3}, 13, v{T+3}
    s_lshl_b32 s38, s33, 8
    v_lshl_add_u32 v{T+4}, v{T+1}, 3, s38
    v_add_u32 v{T+3}, v{T+3}, v{T+4}
    v_fma_f32 v{T+4}, -v{T+2}, v{LS}, 1.0
    v_fma_f32 v{T+2}, v{T+4}, v{T+2}, v{T+2}
    ''')
    for db in range(4):
        for g in range(4):
            r = O + db * 16 + g * 4
            for e in range(4):
                k(f'v_mul_f32 v{r+e}, v{T+2}, v{r+e}')
            k(f'''
            v_cvt_pk_bf16_f32 v{r}, v{r}, v{r+1}
            v_cvt_pk_bf16_f32 v{r+1}, v{r+2}, v{r+3}
            buffer_store_dwordx2 v[{r}:{r+1}], v{T+3}, s[20:23], 0 offen offset:{db*64+g*16}
            ''')
    if 'stamp' in XF:
        k(f'''
        s_memtime s[64:65]
        s_memrealtime s[66:67]
        s_waitcnt lgkmcnt(0)
        s_sub_u32 s64, s64, s60
        s_sub_u32 s66, s66, s62
        s_mov_b32 s58, 256
        s_mov_b32 s59, 0x00020000
        v_mov_b32 v2, s64
        v_mov_b32 v3, s66
        ''')
        if 'marks' in XF:
            k('''
            s_sub_u32 s80, s80, s60
            s_sub_u32 s82, s82, s60
            s_lshl_b32 s80, s80, 0
            v_mov_b32 v3, s82
            ''')
            k('v_mov_b32 v2, s80') if 'marks1' in XF else None
        if 'phase' in XF:
            k('''
            v_mov_b32 v2, s70
            v_mov_b32 v3, s71
            ''')
        k(f'''
        s_lshl_b32 s64, s34, 3
        v_mov_b32 v1, s64
        s_cmp_lg_u32 s2, 100
        s_cbranch_scc1 {L('end')}
        v_cmp_eq_u32 vcc, 0, v0
        s_and_saveexec_b64 s[68:69], vcc
        buffer_store_dwordx2 v[2:3], v1, s[56:59], 0 offen
        ''')
    k(f'''
    {L('end')}:
    s_endpgm
    ''')
    return k, dict(vgpr=NV, sgpr=88, grid=256, block=512, lds=8 * KSL)
```

```python
import sys, os
sys.path.insert(0, 'gen')
GX = os.environ.get('GX', '')
from asmlib import Kernel

KA = dict(x=0, k=8, v=16, wq=24, wo=32, bx=40, wg=48, wu=56, wd=64, c=72, wmod=80, out=88, dbg=96, ws=104)
WS_MOD = 0
WS_H1 = 0x100000
WS_X2 = 0x500000
WS_H2 = 0x900000
WS_Q = 0x1000000
WS_O = 0x2000000
WS_GU = 0x3000000
LOG2E = 0x3fb8aa3b
SCALE = 0x3db504f3

def srd(k, d, base_lo, base_hi, nbytes, off=0):
    if off:
        k(f's_add_u32 s{d}, s{base_lo}, 0x{off:x}')
        k(f's_addc_u32 s{d+1}, s{base_hi}, 0')
    else:
        k(f's_mov_b32 s{d}, s{base_lo}')
        k(f's_mov_b32 s{d+1}, s{base_hi}')
    k(f's_mov_b32 s{d+2}, 0x{nbytes:x}')
    k(f's_mov_b32 s{d+3}, 0x00020000')

def rnd(k, d, s):
    k(f'v_cvt_pk_bf16_f32 v{d}, 0, v{s}')

def gen_mod():
    k = Kernel('mod_kernel')
    k(f'''
    s_cmp_ge_u32 s2, 192
    s_cbranch_scc1 L_mod_end
    s_load_dwordx2 s[4:5], s[0:1], {KA['c']}
    s_load_dwordx2 s[6:7], s[0:1], {KA['wmod']}
    s_load_dwordx2 s[8:9], s[0:1], {KA['ws']}
    v_lshrrev_b32 v1, 2, v0
    v_and_b32 v2, 3, v0
    v_lshlrev_b32 v3, 1, v1
    s_mov_b32 s3, 12288
    v_mul_lo_u32 v4, v1, s3
    v_lshl_add_u32 v4, v2, 4, v4
    s_lshl_b32 s3, s2, 6
    v_add_u32 v4, s3, v4
    s_waitcnt lgkmcnt(0)
    ''')
    srd(k, 12, 4, 5, 2048)
    srd(k, 16, 6, 7, 1024 * 6144 * 2)
    srd(k, 20, 8, 9, 6144 * 4, WS_MOD)
    for p in range(16):
        k(f'buffer_load_ushort v{10+p}, v3, s[12:15], 0 offen offset:{p*128}')
    for p in range(16):
        k(f's_mov_b32 s24, {p*786432}')
        k(f'buffer_load_dwordx4 v[{32+4*p}:{35+4*p}], v4, s[16:19], s24 offen')
    k('s_waitcnt vmcnt(16)')
    k(f's_mov_b32 s25, 0x{LOG2E:x}')
    for p in range(16):
        x = 10 + p
        k(f'''
        v_lshlrev_b32 v{x}, 16, v{x}
        v_mul_f32 v5, s25, v{x}
        v_exp_f32 v5, -v5
        v_add_f32 v5, 1.0, v5
        v_rcp_f32 v6, v5
        v_mul_f32 v7, v{x}, v6
        v_fma_f32 v8, -v7, v5, v{x}
        v_fma_f32 v7, v8, v6, v7
        ''')
        rnd(k, x, 7)
    for i in range(8):
        k(f'v_mov_b32 v{100+i}, 0')
    k('s_mov_b32 s26, 0xffff0000')
    for p in range(16):
        k(f's_waitcnt vmcnt({15-p})')
        for i in range(4):
            d = 32 + 4 * p + i
            k(f'''
            v_lshlrev_b32 v5, 16, v{d}
            v_and_b32 v6, s26, v{d}
            v_fmac_f32 v{100+2*i}, v{10+p}, v5
            v_fmac_f32 v{101+2*i}, v{10+p}, v6
            ''')
    k(f'''
    v_lshlrev_b32 v5, 5, v0
    ds_write_b128 v5, v[100:103]
    ds_write_b128 v5, v[104:107] offset:16
    v_and_b32 v6, 31, v0
    v_lshrrev_b32 v7, 5, v0
    v_lshlrev_b32 v8, 10, v7
    v_lshl_add_u32 v8, v6, 2, v8
    s_waitcnt lgkmcnt(0)
    s_barrier
    ''')
    for r in range(8):
        k(f'ds_read_b32 v{10+r}, v8 offset:{r*128}')
    k('s_waitcnt lgkmcnt(0)')
    for r in range(1, 8):
        k(f'v_add_f32 v10, v10, v{10+r}')
    k(f'''
    v_lshlrev_b32 v8, 7, v7
    v_lshl_add_u32 v8, v6, 2, v8
    ds_write_b32 v8, v10 offset:8192
    v_lshlrev_b32 v9, 2, v6
    s_waitcnt lgkmcnt(0)
    s_barrier
    ''')
    for r in range(8):
        k(f'ds_read_b32 v{10+r}, v9 offset:{8192+r*128}')
    k('s_waitcnt lgkmcnt(0)')
    for r in range(1, 8):
        k(f'v_add_f32 v10, v10, v{10+r}')
    rnd(k, 10, 10)
    k(f'''
    s_lshl_b32 s3, s2, 7
    v_add_u32 v9, s3, v9
    v_cmp_gt_u32 vcc, 32, v0
    s_and_saveexec_b64 s[28:29], vcc
    s_cbranch_execz L_mod_end
    buffer_store_dword v10, v9, s[20:23], 0 offen
    L_mod_end:
    s_endpgm
    ''')
    return k, dict(vgpr=112, sgpr=32, grid=192, block=256, lds=16384)

def wave_sum(k, v, t):
    for off in (0x041F, 0x081F, 0x101F, 0x201F, 0x401F):
        k(f'''
        ds_swizzle_b32 v{t}, v{v} offset:0x{off:x}
        s_waitcnt lgkmcnt(0)
        v_add_f32 v{v}, v{v}, v{t}
        ''')
    k(f'''
    v_mov_b32 v{t}, v{v}
    v_permlane32_swap_b32 v{v}, v{t}
    v_add_f32 v{v}, v{v}, v{t}
    ''')

def gen_ln(name, src_from_ws, src_off, shift_idx, scale_idx, dst_off):
    k = Kernel(name)
    k(f'''
    s_cmp_ge_u32 s2, 512
    s_cbranch_scc1 L_{name}_end
    s_load_dwordx2 s[4:5], s[0:1], {KA['ws'] if src_from_ws else KA['x']}
    s_load_dwordx2 s[8:9], s[0:1], {KA['ws']}
    v_lshrrev_b32 v1, 6, v0
    v_and_b32 v2, 63, v0
    s_lshl_b32 s3, s2, 2
    v_add_u32 v1, s3, v1
    v_lshlrev_b32 v1, 11, v1
    v_lshl_add_u32 v1, v2, 4, v1
    v_lshlrev_b32 v3, 5, v2
    s_waitcnt lgkmcnt(0)
    ''')
    srd(k, 12, 4, 5, 2048 * 2048, src_off)
    srd(k, 16, 8, 9, 6144 * 4, WS_MOD)
    srd(k, 20, 8, 9, 2048 * 2048, dst_off)
    k(f'''
    buffer_load_dwordx4 v[4:7], v1, s[12:15], 0 offen
    buffer_load_dwordx4 v[8:11], v1, s[12:15], 0 offen offset:1024
    s_mov_b32 s24, {shift_idx*4096}
    s_mov_b32 s25, {scale_idx*4096}
    buffer_load_dwordx4 v[48:51], v3, s[16:19], s24 offen
    buffer_load_dwordx4 v[52:55], v3, s[16:19], s24 offen offset:16
    buffer_load_dwordx4 v[56:59], v3, s[16:19], s24 offen offset:2048
    buffer_load_dwordx4 v[60:63], v3, s[16:19], s24 offen offset:2064
    buffer_load_dwordx4 v[64:67], v3, s[16:19], s25 offen
    buffer_load_dwordx4 v[68:71], v3, s[16:19], s25 offen offset:16
    buffer_load_dwordx4 v[72:75], v3, s[16:19], s25 offen offset:2048
    buffer_load_dwordx4 v[76:79], v3, s[16:19], s25 offen offset:2064
    s_mov_b32 s26, 0xffff0000
    s_waitcnt vmcnt(8)
    ''')
    for i in range(8):
        k(f'v_lshlrev_b32 v{16+2*i}, 16, v{4+i}')
        k(f'v_and_b32 v{17+2*i}, s26, v{4+i}')
    k('v_add_f32 v12, v16, v17')
    for i in range(2, 16):
        k(f'v_add_f32 v12, v12, v{16+i}')
    wave_sum(k, 12, 13)
    k('v_mul_f32 v12, 0x3a800000, v12')
    k('v_mov_b32 v14, 0')
    for i in range(16):
        k(f'v_sub_f32 v13, v{16+i}, v12')
        k(f'v_fmac_f32 v14, v13, v13')
    wave_sum(k, 14, 13)
    k('v_mul_f32 v14, 0x3a800000, v14')
    rnd(k, 12, 12)
    rnd(k, 14, 14)
    k('v_add_f32 v14, 0x3727c5ac, v14')
    rnd(k, 14, 14)
    k('v_sqrt_f32 v14, v14')
    rnd(k, 14, 14)
    k('v_rcp_f32 v15, v14')
    k('s_waitcnt vmcnt(0)')
    for i in range(16):
        x = 16 + i
        k(f'v_sub_f32 v{x}, v{x}, v12')
        rnd(k, x, x)
        k(f'''
        v_mul_f32 v13, v{x}, v15
        v_fma_f32 v32, -v13, v14, v{x}
        v_fma_f32 v13, v32, v15, v13
        ''')
        rnd(k, 13, 13)
        k(f'v_add_f32 v32, 1.0, v{64+i}')
        rnd(k, 32, 32)
        k(f'v_mul_f32 v13, v13, v32')
        rnd(k, 13, 13)
        k(f'v_add_f32 v{x}, v13, v{48+i}')
    for i in range(8):
        k(f'v_cvt_pk_bf16_f32 v{4+i}, v{16+2*i}, v{17+2*i}')
    k(f'''
    buffer_store_dwordx4 v[4:7], v1, s[20:23], 0 offen
    buffer_store_dwordx4 v[8:11], v1, s[20:23], 0 offen offset:1024
    L_{name}_end:
    s_endpgm
    ''')
    return k, dict(vgpr=80, sgpr=32, grid=512, block=256, lds=0)

STG = 49152
def gen_gemm(name, cfg):
    BM, NBS, U, K = cfg['BM'], cfg['NBS'], cfg['U'], cfg['K']
    MB = BM // 32; NB = 2 * NBS; S = 2 * U
    NS = K // (64 * U)
    lda = cfg['lda']; ldb = cfg['ldb']; ldo = cfg['ldo']
    MT, NT = cfg['MT'], cfg['NT']
    nwg = MT * NT
    epi = cfg['epi']
    ROWB = 256 if epi == 'q' else 128
    OST = ROWB + 16
    last_slot = (NS - 1) % 3
    OBASE = STG if last_slot != 1 else 2 * STG
    k = Kernel(name)
    L = lambda s: f'L_{name}_{s}'
    k(f'''
    s_cmp_ge_u32 s2, {nwg}
    s_cbranch_scc1 {L('end')}
    s_load_dwordx2 s[4:5], s[0:1], {KA['ws']}
    s_load_dwordx2 s[6:7], s[0:1], {cfg['B'][0]}
    s_load_dwordx2 s[40:41], s[0:1], {cfg['B'][-1]}
    s_load_dwordx2 s[42:43], s[0:1], {KA['x']}
    s_load_dwordx2 s[44:45], s[0:1], {KA['out']}
    v_lshrrev_b32 v1, 6, v0
    v_and_b32 v0, 63, v0
    s_nop 0
    v_readfirstlane_b32 s34, v1
    s_and_b32 s3, s2, 7
    s_lshr_b32 s35, s2, 3
    ''')
    gx = MT // 4
    gsh = gx.bit_length() - 1
    k(f'''
    s_and_b32 s32, s3, {gx-1}
    s_lshl_b32 s32, s32, 2
    s_and_b32 s36, s35, 3
    s_add_u32 s32, s32, s36
    s_lshr_b32 s33, s3, {gsh}
    s_mul_i32 s33, s33, {NT//(8//gx)}
    s_lshr_b32 s36, s35, 2
    s_add_u32 s33, s33, s36
    s_mul_i32 s32, s32, {BM}
    s_waitcnt lgkmcnt(0)
    ''')
    if 'stamp' in GX:
        k('''
        s_memtime s[60:61]
        s_load_dwordx2 s[56:57], s[0:1], 96
        s_waitcnt lgkmcnt(0)
        ''')
    srd(k, 8, 4, 5, 2048 * lda, cfg['Aoff'])
    srd(k, 12, 6, 7, K * ldb)
    srd(k, 16, 40, 41, K * ldb)
    if epi == 'q':
        srd(k, 20, 4, 5, 2048 * ldo, cfg['Ooff'])
    elif epi == 'gu':
        srd(k, 20, 4, 5, 2048 * ldo, cfg['Ooff'])
    else:
        if cfg['out_is_out']:
            srd(k, 20, 44, 45, 2048 * ldo)
        else:
            srd(k, 20, 4, 5, 2048 * ldo, cfg['Ooff'])
        if cfg['res_from_ws']:
            srd(k, 24, 4, 5, 2048 * 2048, cfg['Roff'])
        else:
            srd(k, 24, 42, 43, 2048 * 2048)
        srd(k, 28, 4, 5, 6144 * 4, WS_MOD)
    k(f'''
    s_cmp_ge_u32 s34, 4
    s_cbranch_scc1 {L('loader')}
    ''')
    ACC = 4
    F0 = ACC + MB * NB * 4
    FS = (MB + NB) * 4
    def fA(st, mb): return F0 + st * FS + mb * 4
    def fB(st, nb): return F0 + st * FS + MB * 4 + nb * 4
    AD = F0 + 2 * FS
    vA = [AD, AD + 1]; vB = [AD + 2, AD + 3]; vAb = [AD + 4, AD + 5]; vBb = [AD + 6, AD + 7]
    T0 = AD + 8
    k(f'''
    s_and_b32 s36, s34, 1
    s_lshr_b32 s37, s34, 1
    v_and_b32 v{T0}, 15, v0
    v_lshrrev_b32 v{T0+1}, 4, v0
    v_lshrrev_b32 v{T0+2}, 1, v{T0}
    v_xor_b32 v{T0+2}, v{T0+1}, v{T0+2}
    v_lshlrev_b32 v{T0+2}, 4, v{T0+2}
    v_lshl_add_u32 v{T0+2}, v{T0}, 7, v{T0+2}
    s_mul_i32 s38, s36, {(BM//2)*128}
    v_add_u32 v{vAb[0]}, s38, v{T0+2}
    v_xor_b32 v{vAb[1]}, 64, v{vAb[0]}
    ''')
    k(f'''
    v_lshrrev_b32 v{T0+2}, 3, v{T0}
    v_and_b32 v{T0+3}, 1, v{T0+1}
    v_lshl_or_b32 v{T0+2}, v{T0+3}, 1, v{T0+2}
    s_lshl_b32 s38, s37, 1
    v_xor_b32 v{T0+2}, s38, v{T0+2}
    v_lshlrev_b32 v{T0+2}, 5, v{T0+2}
    v_and_b32 v{T0+3}, 3, v{T0}
    v_lshl_add_u32 v{T0+2}, v{T0+3}, 3, v{T0+2}
    v_lshrrev_b32 v{T0+3}, 2, v{T0}
    v_lshl_add_u32 v{T0+3}, v{T0+1}, 3, v{T0+3}
    v_lshl_add_u32 v{vBb[0]}, v{T0+3}, 7, v{T0+2}
    v_xor_b32 v{vBb[1]}, 32, v{vBb[0]}
    v_mov_b32 v{vA[0]}, v{vAb[0]}
    v_mov_b32 v{vA[1]}, v{vAb[1]}
    v_mov_b32 v{vB[0]}, v{vBb[0]}
    v_mov_b32 v{vB[1]}, v{vBb[1]}
    ''')
    for i in range(MB * NB * 4):
        k(f'v_mov_b32 v{ACC+i}, 0')
    def a_off(u): return u * BM * 128
    def b_off(u, sub): return 32768 + (u * NBS + sub) * 8192
    def reads(s, st):
        u, sb = s >> 1, s & 1
        out = []
        for mb in range(MB):
            out.append(f'ds_read_b128 v[{fA(st,mb)}:{fA(st,mb)+3}], v{vA[sb]} offset:{a_off(u)+mb*2048}')
        for nb in range(NB):
            sub, j = nb >> 1, nb & 1
            for h in range(2):
                out.append(f'ds_read_b64_tr_b16 v[{fB(st,nb)+2*h}:{fB(st,nb)+2*h+1}], v{vB[j]} offset:{b_off(u,sub)+(32*sb+4*h)*128}')
        return out
    def mfmas(st):
        out = []
        for mb in range(MB):
            for nb in range(NB):
                a = ACC + (mb * NB + nb) * 4
                out.append(f'v_mfma_f32_16x16x32_bf16 v[{a}:{a+3}], v[{fB(st,nb)}:{fB(st,nb)+3}], v[{fA(st,mb)}:{fA(st,mb)+3}], v[{a}:{a+3}]')
        return out
    def interleave(mf, rd, pre=()):
        out = list(pre)
        n = len(mf)
        ri = 0
        for i, m in enumerate(mf):
            out.append(m)
            want = min(len(rd), ((i + 1) * len(rd) * 4 + 3 * n - 1) // (3 * n))
            while ri < want:
                out.append(rd[ri]); ri += 1
        out += rd[ri:]
        return out
    k(f'''
    s_mov_b32 s39, 0
    s_mov_b32 s35, 0
    s_barrier
    ''')
    if 'stamp' in GX: k('s_memtime s[62:63]\ns_waitcnt lgkmcnt(0)')
    for r in reads(0, 0): k(r)
    def stage_body(last):
        for s in range(S):
            k('s_waitcnt lgkmcnt(0)')
            if s < S - 1:
                for x in interleave(mfmas(s & 1), reads(s + 1, (s + 1) & 1)): k(x)
            elif not last:
                k(f'''
                s_barrier
                s_add_u32 s39, s39, {STG}
                s_cmp_ge_u32 s39, {3*STG}
                s_cselect_b32 s39, 0, s39
                v_add_u32 v{vA[0]}, s39, v{vAb[0]}
                v_add_u32 v{vA[1]}, s39, v{vAb[1]}
                v_add_u32 v{vB[0]}, s39, v{vBb[0]}
                v_add_u32 v{vB[1]}, s39, v{vBb[1]}
                ''')
                for x in interleave(mfmas(s & 1), reads(0, 0)): k(x)
            else:
                epi_pre()
                for x in mfmas(s & 1): k(x)
    E0 = F0
    vO = T0
    vW = T0 + 8
    def epi_pre():
        ncols = 64 * (NBS if epi == 'q' else 1)
        k(f'''
        v_and_b32 v{T0+1}, 15, v0
        v_lshrrev_b32 v{T0+2}, 4, v0
        s_mul_i32 s46, s36, {BM//2}
        s_add_u32 s46, s46, s32
        v_add_u32 v{T0+1}, s46, v{T0+1}
        s_mov_b32 s46, {ldo}
        v_mul_lo_u32 v{T0+1}, v{T0+1}, s46
        s_mul_i32 s46, s33, {ncols*2}
        s_lshl_b32 s47, s37, 6
        s_add_u32 s46, s46, s47
        v_lshl_add_u32 v{T0+2}, v{T0+2}, 3, s46
        v_add_u32 v{vO}, v{T0+1}, v{T0+2}
        ''')
        k(f'''
        v_and_b32 v{T0+1}, 15, v0
        s_mul_i32 s46, s36, {BM//2}
        v_add_u32 v{T0+1}, s46, v{T0+1}
        v_mul_u32_u24 v{T0+1}, {OST}, v{T0+1}
        v_lshrrev_b32 v{T0+3}, 4, v0
        s_lshl_b32 s47, s37, 6
        s_add_u32 s47, s47, {OBASE}
        v_lshl_add_u32 v{T0+3}, v{T0+3}, 3, s47
        v_add_u32 v{vW}, v{T0+1}, v{T0+3}
        ''')
        if epi == 'res':
            k(f'v_lshlrev_b32 v{T0+3}, 1, v{T0+2}')
            k(f's_mov_b32 s46, {cfg["gidx"]*4096}')
            for j in range(NB):
                k(f'buffer_load_dwordx4 v[{E0+j*4}:{E0+j*4+3}], v{T0+3}, s[28:31], s46 offen offset:{j*64}')
            for mb in range(MB):
                k(f's_mov_b32 s46, {mb*16*ldo}')
                for j in range(NB):
                    r = E0 + NB * 4 + (mb * NB + j) * 2
                    k(f'buffer_load_dwordx2 v[{r}:{r+1}], v{vO}, s[24:27], s46 offen offset:{j*32}')
    k(f'{L("cloop")}:')
    stage_body(False)
    k(f'''
    s_add_u32 s35, s35, 1
    s_cmp_lt_u32 s35, {NS-1}
    s_cbranch_scc1 {L("cloop")}
    ''')
    stage_body(True)
    if 'stamp' in GX: k('s_nop 15\ns_memtime s[64:65]\ns_waitcnt lgkmcnt(0)')
    t = T0 + 4
    if epi == 'q':
        for mb in range(MB):
            k(f's_mov_b32 s46, {mb*16*ldo}')
            for nb in range(NB):
                a = ACC + (mb * NB + nb) * 4
                sub, j = nb >> 1, nb & 1
                k(f'''
                v_cvt_pk_bf16_f32 v{a}, v{a}, v{a+1}
                v_cvt_pk_bf16_f32 v{a+1}, v{a+2}, v{a+3}
                ds_write_b64 v{vW}, v[{a}:{a+1}] offset:{mb*16*OST+sub*128+j*32}
                ''')
    elif epi == 'gu':
        k(f's_mov_b32 s47, 0x{LOG2E:x}')
        for mb in range(MB):
            k(f's_mov_b32 s46, {mb*16*ldo}')
            for j in range(2):
                g = ACC + (mb * NB + j) * 4
                u = ACC + (mb * NB + 2 + j) * 4
                for e in range(4):
                    rnd(k, g + e, g + e)
                    k(f'''
                    v_mul_f32 v{t}, s47, v{g+e}
                    v_exp_f32 v{t}, -v{t}
                    v_add_f32 v{t}, 1.0, v{t}
                    v_rcp_f32 v{t+1}, v{t}
                    v_mul_f32 v{t+2}, v{g+e}, v{t+1}
                    v_fma_f32 v{t+3}, -v{t+2}, v{t}, v{g+e}
                    v_fma_f32 v{t+2}, v{t+3}, v{t+1}, v{t+2}
                    ''')
                    rnd(k, t + 2, t + 2)
                    rnd(k, u + e, u + e)
                    k(f'v_mul_f32 v{g+e}, v{t+2}, v{u+e}')
                k(f'''
                v_cvt_pk_bf16_f32 v{g}, v{g}, v{g+1}
                v_cvt_pk_bf16_f32 v{g+1}, v{g+2}, v{g+3}
                ds_write_b64 v{vW}, v[{g}:{g+1}] offset:{mb*16*OST+j*32}
                ''')
    else:
        k('s_mov_b32 s47, 0xffff0000')
        k('s_waitcnt vmcnt(0)')
        for mb in range(MB):
            k(f's_mov_b32 s46, {mb*16*ldo}')
            for j in range(NB):
                a = ACC + (mb * NB + j) * 4
                r = E0 + NB * 4 + (mb * NB + j) * 2
                for e in range(4):
                    rnd(k, a + e, a + e)
                    k(f'v_mul_f32 v{a+e}, v{a+e}, v{E0+j*4+e}')
                    rnd(k, a + e, a + e)
                    if e & 1:
                        k(f'v_and_b32 v{t}, s47, v{r+(e>>1)}')
                    else:
                        k(f'v_lshlrev_b32 v{t}, 16, v{r+(e>>1)}')
                    k(f'v_add_f32 v{a+e}, v{a+e}, v{t}')
                k(f'''
                v_cvt_pk_bf16_f32 v{a}, v{a}, v{a+1}
                v_cvt_pk_bf16_f32 v{a+1}, v{a+2}, v{a+3}
                ds_write_b64 v{vW}, v[{a}:{a+1}] offset:{mb*16*OST+j*32}
                ''')
    def coop_store(wreg):
        LPR = ROWB // 16; RPI = 64 // LPR; nins = BM // 8 // RPI
        lsh = LPR.bit_length() - 1
        ncolb = 256 if epi == 'q' else 128
        k(f'''
        v_lshrrev_b32 v4, {lsh}, v0
        v_and_b32 v5, {LPR-1}, v0
        s_mul_i32 s46, s{wreg}, {BM//8}
        v_add_u32 v4, s46, v4
        v_mul_u32_u24 v6, {OST}, v4
        v_lshl_add_u32 v6, v5, 4, v6
        v_add_u32 v6, {OBASE}, v6
        v_add_u32 v4, s32, v4
        s_mov_b32 s46, {ldo}
        v_mul_lo_u32 v4, v4, s46
        s_mul_i32 s46, s33, {ncolb}
        v_lshl_add_u32 v5, v5, 4, s46
        v_add_u32 v4, v4, v5
        ''')
        for i in range(nins):
            k(f'ds_read_b128 v[{8+4*i}:{11+4*i}], v6 offset:{i*RPI*OST}')
        for i in range(nins):
            k(f's_waitcnt lgkmcnt({nins-1-i})')
            k(f's_mov_b32 s46, {i*RPI*ldo}')
            k(f'buffer_store_dwordx4 v[{8+4*i}:{11+4*i}], v4, s[20:23], s46 offen')
    k('s_waitcnt lgkmcnt(0)\ns_barrier')
    coop_store(34)
    if 'stamp' in GX:
        k(f'''
        s_waitcnt vmcnt(0)
        s_memtime s[66:67]
        s_waitcnt lgkmcnt(0)
        s_sub_u32 s62, s62, s60
        s_sub_u32 s64, s64, s60
        s_sub_u32 s66, s66, s60
        s_mov_b32 s58, 256
        s_mov_b32 s59, 0x00020000
        v_mov_b32 v4, s62
        v_mov_b32 v5, s64
        v_mov_b32 v6, s66
        v_mov_b32 v7, 0
        s_lshl_b32 s64, s34, 4
        v_mov_b32 v1, s64
        s_cmp_lg_u32 s2, 100
        s_cbranch_scc1 {L('end')}
        v_cmp_eq_u32 vcc, 0, v0
        s_and_saveexec_b64 s[68:69], vcc
        buffer_store_dwordx4 v[4:7], v1, s[56:59], 0 offen
        ''')
    k('s_endpgm')
    nv_compute = T0 + 10
    k(f'{L("loader")}:')
    k(f'''
    s_sub_u32 s34, s34, 4
    s_and_b32 s36, s34, 1
    s_lshr_b32 s37, s34, 1
    v_lshrrev_b32 v1, 3, v0
    v_and_b32 v2, 7, v0
    v_lshrrev_b32 v3, 4, v0
    ''')
    if U == 1:
        k('s_lshl_b32 s46, s34, 6')
        k('s_mov_b32 s47, 0')
    else:
        k('s_lshl_b32 s46, s36, 6')
        k('s_lshl_b32 s47, s37, 7')
    k(f'''
    s_add_u32 s46, s46, s32
    s_mov_b32 s48, {lda}
    ''')
    for a in range(8):
        k(f'''
        v_add_u32 v4, {(4*a)&7}, v3
        v_and_b32 v4, 7, v4
        v_xor_b32 v4, v2, v4
        v_lshlrev_b32 v4, 4, v4
        v_add_u32 v5, s46, v1
        v_add_u32 v5, {8*a}, v5
        v_mul_lo_u32 v5, v5, s48
        v_add3_u32 v{8+a}, v5, v4, s47
        ''')
    if U == 1:
        k(f'''
        s_cmp_eq_u32 s37, 0
        s_cselect_b32 s12, s12, s16
        s_cselect_b32 s13, s13, s17
        s_lshl_b32 s46, s36, 5
        ''')
        if epi == 'q':
            k(f'''
            s_mul_i32 s47, s33, 256
            s_lshl_b32 s49, s37, 7
            s_add_u32 s47, s47, s49
            ''')
        else:
            k('s_mul_i32 s47, s33, 128')
    else:
        k(f'''
        s_lshl_b32 s46, s36, 5
        s_lshl_b32 s49, s37, 6
        s_add_u32 s46, s46, s49
        s_mul_i32 s47, s33, 128
        ''')
    k(f's_mov_b32 s48, {ldb}')
    for b in range(4):
        k(f'''
        v_and_b32 v4, 1, v3
        v_or_b32 v4, {(b&1)<<1}, v4
        v_lshrrev_b32 v5, 1, v2
        v_xor_b32 v4, v5, v4
        v_lshlrev_b32 v4, 5, v4
        v_and_b32 v5, 1, v2
        v_lshl_add_u32 v4, v5, 4, v4
        v_add_u32 v5, s46, v1
        v_add_u32 v5, {8*b}, v5
        v_mul_lo_u32 v5, v5, s48
        v_add3_u32 v{16+b}, v5, v4, s47
        ''')
    k(f'''
    s_lshl_b32 s50, s34, 13
    s_lshl_b32 s51, s34, 12
    s_add_u32 s51, s51, 32768
    s_mov_b32 s52, 0
    s_mov_b32 s53, 0
    s_mov_b32 s39, 0
    ''')
    def issue():
        for a in range(8):
            k(f'''
            s_add_u32 s54, s39, s50
            s_add_u32 m0, s54, {a*1024}
            s_nop 0
            buffer_load_dwordx4 v{8+a}, s[8:11], s52 offen lds
            ''')
        for b in range(4):
            k(f'''
            s_add_u32 s54, s39, s51
            s_add_u32 m0, s54, {b*1024}
            s_nop 0
            buffer_load_dwordx4 v{16+b}, s[12:15], s53 offen lds
            ''')
        k(f'''
        s_add_u32 s52, s52, {128*U}
        s_add_u32 s53, s53, {64*U*ldb}
        s_add_u32 s39, s39, {STG}
        s_cmp_ge_u32 s39, {3*STG}
        s_cselect_b32 s39, 0, s39
        ''')
    issue(); issue(); issue()
    k(f'''
    s_waitcnt vmcnt(24)
    s_barrier
    s_mov_b32 s35, 0
    {L("lloop")}:
    s_waitcnt vmcnt(12)
    s_barrier
    ''')
    issue()
    k(f'''
    s_add_u32 s35, s35, 1
    s_cmp_lt_u32 s35, {NS-3}
    s_cbranch_scc1 {L("lloop")}
    s_waitcnt vmcnt(12)
    s_barrier
    s_waitcnt vmcnt(0)
    s_barrier
    s_add_u32 s34, s34, 4
    s_barrier
    ''')
    coop_store(34)
    k(f'''
    {L("end")}:
    s_endpgm
    ''')
    return k, dict(vgpr=max(nv_compute, 48), sgpr=72, grid=nwg, block=512, lds=3 * STG)

def build(kernels, path):
    hdr = open('adaLN_cond__gqa_block_cached__swiglu_ffn__prompt.s.ref').read().split('; Override launch')[0]
    out = [hdr.rstrip('\n')]
    for k, m in kernels:
        out.append(f'; @launch kernel={k.name} grid=({m["grid"]},1,1) block=({m["block"]},1,1) lds={m["lds"]}')
    out.append('.amdgcn_target "amdgcn-amd-amdhsa--gfx950"')
    out.append('.text')
    seen = set()
    for k, m in kernels:
        if k.name in seen: continue
        seen.add(k.name)
        k.pad()
        out.append(f'.globl {k.name}\n.p2align 8\n.type {k.name},@function\n{k.name}:')
        out.append(k.text())
    out.append('.section .rodata,"a"')
    seen = set()
    for k, m in kernels:
        if k.name in seen: continue
        seen.add(k.name)
        v = (m['vgpr'] + 7) // 8 * 8
        out.append(f'''.p2align 6
.amdhsa_kernel {k.name}
  .amdhsa_next_free_vgpr {v}
  .amdhsa_next_free_sgpr {m['sgpr']}
  .amdhsa_accum_offset {(v+3)//4*4}
  .amdhsa_group_segment_fixed_size 0
  .amdhsa_kernarg_size 112
  .amdhsa_user_sgpr_count 2
  .amdhsa_user_sgpr_kernarg_segment_ptr 1
  .amdhsa_system_sgpr_workgroup_id_x 1
.end_amdhsa_kernel''')
    open(path, 'w').write('\n'.join(out) + '\n')

if __name__ == '__main__':
    from attn2 import gen_attn
    ks = []
    ks.append(gen_mod())
    ks.append(gen_ln('ln1_kernel', False, 0, 0, 1, WS_H1))
    ks.append(gen_gemm('qproj_kernel', dict(BM=256, NBS=2, U=1, K=1024, lda=2048, Aoff=WS_H1, B=[KA['wq'], KA['wq']], ldb=8192,
                                            ldo=8192, Ooff=WS_Q, MT=8, NT=32, epi='q')))
    ks.append(gen_attn())
    ks.append(gen_gemm('wo_kernel', dict(BM=128, NBS=1, U=2, K=4096, lda=8192, Aoff=WS_O, B=[KA['wo']], ldb=2048, ldo=2048,
                                         Ooff=WS_X2, MT=16, NT=16, epi='res', gidx=2, out_is_out=False, res_from_ws=False)))
    ks.append(gen_ln('ln2_kernel', True, WS_X2, 3, 4, WS_H2))
    ks.append(gen_gemm('gu_kernel', dict(BM=256, NBS=2, U=1, K=1024, lda=2048, Aoff=WS_H2, B=[KA['wg'], KA['wu']], ldb=7168,
                                         ldo=7168, Ooff=WS_GU, MT=8, NT=56, epi='gu')))
    ks.append(gen_gemm('down_kernel', dict(BM=128, NBS=1, U=2, K=3584, lda=7168, Aoff=WS_GU, B=[KA['wd']], ldb=2048, ldo=2048,
                                           MT=16, NT=16, epi='res', gidx=5, out_is_out=True, res_from_ws=True, Roff=WS_X2)))
    import os
    build(ks, os.environ.get('OUT', 'adaLN_cond__gqa_block_cached__swiglu_ffn__prompt.s'))
```

```python
from asmlib import Kernel
from gen import *
import os
XF = os.environ.get('XF', '')

def gen_attn():
    name = 'attn_kernel'
    k = Kernel(name)
    L = lambda s: f'L_{name}_{s}'
    NT = 32
    KSL = 16384
    KB = 96 * 1024; VB = 32 * 1024
    def ksl(j): return ((j + 3) % 4) * KSL
    def vsl(j): return ((j + 1) % 4) * KSL
    STG = 49152
    Q = 4
    S = 36
    O = 68
    P = 132
    KF = 148
    VF = 164
    AK = 180
    AV = 188
    DM = 196
    M = 200; LS = 201; AL = 202; MN = 203; T = 204
    SUM = 212
    CL = 216; CS = 217
    CT = 218
    PFA = 219; PFD = 220; QA = 221
    PE = 224
    NV = 256
    k(f'''
    s_cmp_ge_u32 s2, 256
    s_cbranch_scc1 {L('end')}
    s_load_dwordx2 s[4:5], s[0:1], {KA['ws']}
    s_load_dwordx2 s[6:7], s[0:1], {KA['k']}
    s_load_dwordx2 s[40:41], s[0:1], {KA['v']}
    s_load_dwordx2 s[24:25], s[0:1], {KA['wo']}
    s_load_dwordx4 s[28:31], s[0:1], {KA['wg']}
    s_load_dwordx2 s[26:27], s[0:1], {KA['wd']}
    s_load_dwordx2 s[88:89], s[0:1], {KA['wq']}
    v_lshrrev_b32 v{T}, 6, v0
    v_and_b32 v0, 63, v0
    s_nop 0
    v_readfirstlane_b32 s34, v{T}
    s_and_b32 s3, s2, 7
    s_lshr_b32 s35, s2, 3
    s_lshr_b32 s32, s3, 1
    s_lshl_b32 s33, s3, 2
    s_and_b32 s36, s35, 3
    s_add_u32 s33, s33, s36
    s_lshr_b32 s36, s35, 2
    s_lshr_b32 s49, s34, 2
    s_waitcnt lgkmcnt(0)
    ''')
    if 'stamp' in XF:
        k('''
        s_memtime s[60:61]
        s_memrealtime s[62:63]
        s_load_dwordx2 s[56:57], s[0:1], 96
        s_waitcnt lgkmcnt(0)
        s_mov_b32 s72, s60
        s_mov_b32 s70, 0
        s_mov_b32 s71, 0
        s_mov_b32 s77, 0
        ''')
    srd(k, 8, 4, 5, 2048 * 2048, WS_H1)
    srd(k, 84, 88, 89, 1024 * 8192)
    srd(k, 20, 4, 5, 2048 * 8192, WS_O)
    k(f'''
    s_lshr_b32 s37, s34, 1
    s_cmp_eq_u32 s37, 1
    s_cselect_b32 s24, s28, s24
    s_cselect_b32 s25, s29, s25
    s_cmp_eq_u32 s37, 2
    s_cselect_b32 s24, s30, s24
    s_cselect_b32 s25, s31, s25
    s_cmp_eq_u32 s37, 3
    s_cselect_b32 s24, s26, s24
    s_cselect_b32 s25, s27, s25
    s_cmp_eq_u32 s37, 0
    s_cselect_b32 s38, 0x800000, 0
    s_cmp_lg_u32 s37, 0
    s_cselect_b32 s18, 0x700000, s38
    s_mov_b32 s16, s24
    s_mov_b32 s17, s25
    s_mov_b32 s19, 0x00020000
    s_lshr_b32 s38, s18, 8
    s_mul_i32 s38, s38, s2
    s_and_b32 s37, s34, 1
    s_lshl_b32 s37, s37, 14
    s_add_u32 s38, s38, s37
    v_lshlrev_b32 v{PFA}, 6, v0
    v_add_u32 v{PFA}, s38, v{PFA}
    ''')
    k(f'''
    s_cmp_eq_u32 s49, 0
    s_cselect_b32 s6, s40, s6
    s_cselect_b32 s7, s41, s7
    s_lshl_b32 s37, s32, 19
    s_add_u32 s12, s6, s37
    s_addc_u32 s13, s7, 0
    s_mov_b32 s14, 0x80000
    s_mov_b32 s15, 0x00020000
    ''')
    k(f'''
    v_and_b32 v{T}, 31, v0
    v_lshrrev_b32 v{T+1}, 5, v0
    s_lshl_b32 s37, s36, 8
    s_lshl_b32 s38, s34, 5
    s_add_u32 s37, s37, s38
    v_add_u32 v{T+2}, s37, v{T}
    v_lshlrev_b32 v{T+2}, 13, v{T+2}
    s_lshl_b32 s38, s33, 8
    v_lshl_add_u32 v{T+3}, v{T+1}, 4, s38
    v_add_u32 v{T+2}, v{T+2}, v{T+3}
    ''')
    k(f'v_mov_b32 v{QA}, v{T+2}')
    k(f'''
    v_lshrrev_b32 v{T+3}, 4, v0
    v_and_b32 v{T+4}, 15, v0
    s_and_b32 s37, s34, 3
    s_lshl_b32 s37, s37, 4
    s_cmp_eq_u32 s49, 0
    s_cselect_b64 s[50:51], -1, 0
    ''')
    for j in range(4):
        k(f'''
        v_add_u32 v{T+5}, s37, v{T+3}
        v_add_u32 v{T+5}, {4*j}, v{T+5}
        v_and_b32 v{T+6}, 15, v{T+5}
        v_lshlrev_b32 v{T+7}, 2, v{T+3}
        v_cndmask_b32 v{T+6}, v{T+6}, v{T+7}, s[50:51]
        v_xor_b32 v{T+6}, v{T+4}, v{T+6}
        v_lshlrev_b32 v{T+6}, 4, v{T+6}
        v_lshl_add_u32 v{DM+j}, v{T+5}, 8, v{T+6}
        ''')
    k(f'''
    v_and_b32 v{T+3}, 1, v{T}
    v_xor_b32 v{T+3}, v{T+1}, v{T+3}
    v_lshlrev_b32 v{T+3}, 4, v{T+3}
    v_lshl_add_u32 v{T+3}, v{T}, 8, v{T+3}
    v_bfe_u32 v{T+4}, v{T}, 1, 3
    v_add_u32 v{T+3}, {KB}, v{T+3}
    ''')
    for s in range(8):
        k(f'''
        v_xor_b32 v{T+5}, {s}, v{T+4}
        v_lshl_add_u32 v{AK+s}, v{T+5}, 5, v{T+3}
        ''')
    k(f'''
    v_and_b32 v{T+3}, 15, v0
    v_lshrrev_b32 v{T+4}, 2, v{T+3}
    v_lshl_add_u32 v{T+5}, v{T+1}, 2, v{T+4}
    v_lshlrev_b32 v{T+5}, 8, v{T+5}
    v_bfe_u32 v{T+6}, v0, 4, 1
    v_lshl_add_u32 v{T+5}, v{T+6}, 5, v{T+5}
    v_and_b32 v{T+6}, 3, v{T+3}
    v_lshl_add_u32 v{T+5}, v{T+6}, 3, v{T+5}
    v_add_u32 v{T+5}, {VB}, v{T+5}
    ''')
    for db in range(4):
        k(f'''
        v_xor_b32 v{T+6}, {db}, v{T+4}
        v_lshl_add_u32 v{AV+db}, v{T+6}, 6, v{T+5}
        ''')
    for i in range(64):
        k(f'v_mov_b32 v{O+i}, 0')
    k(f'''
    v_mov_b32 v{M}, 0xff800000
    v_mov_b32 v{MN}, 0xff800000
    v_mov_b32 v{LS}, 0
    v_mov_b32 v{CL}, 0x{LOG2E:x}
    v_mov_b32 v{CS}, 0x{SCALE:x}
    v_mov_b32 v{CT}, 0x4b800000
    s_and_b32 s46, s34, 3
    s_lshl_b32 s46, s46, 12
    s_mov_b32 s54, {KB}
    s_cmp_eq_u32 s49, 0
    s_cselect_b32 s37, {VB}, s54
    s_add_u32 s46, s46, s37
    s_mov_b32 s47, 0
    s_lshl_b32 s53, s49, 15
    ''')
    def dma(tile):
        k(f'''
        s_xor_b32 s52, s53, {vsl(tile)}
        s_add_u32 s52, s52, s46
        ''')
        for j in range(4):
            k(f'''
            s_add_u32 m0, s52, {j*1024}
            s_nop 0
            buffer_load_dwordx4 v{DM+j}, s[12:15], s47 offen lds
            ''')
        k('s_add_u32 s47, s47, 16384')
    def kread(slot, n):
        kb, s = n >> 3, n & 7
        r = KF + (n & 3) * 4
        return [f'ds_read_b128 v[{r}:{r+3}], v{AK+s} offset:{ksl(slot) + kb*8192}']
    def qk(n):
        kb, s = n >> 3, n & 7
        r = KF + (n & 3) * 4
        d = S + kb * 16
        c = '0' if s == 0 else f'v[{d}:{d+15}]'
        return f'v_mfma_f32_32x32x16_bf16 v[{d}:{d+15}], v[{r}:{r+3}], v[{Q+4*s}:{Q+4*s+3}], {c}'
    def vread(slot, n):
        db, j = n >> 2, n & 3
        r = VF + (n & 3) * 4
        return [f'ds_read_b64_tr_b16 v[{r}:{r+1}], v{AV+db} offset:{vsl(slot) + (16*j)*256}',
                f'ds_read_b64_tr_b16 v[{r+2}:{r+3}], v{AV+db} offset:{vsl(slot) + (16*j+8)*256}']
    def pv(n):
        db, j = n >> 2, n & 3
        r = VF + (n & 3) * 4
        d = O + db * 16
        return f'v_mfma_f32_32x32x16_bf16 v[{d}:{d+15}], v[{r}:{r+3}], v[{P+4*j}:{P+4*j+3}], v[{d}:{d+15}]'
    def valuR():
        o = []
        for b in range(0, 32, 8):
            for i in range(b, b + 8): o.append(f'v_cvt_pk_bf16_f32 v{S+i}, 0, v{S+i}')
            for i in range(b, b + 8): o.append(f'v_mul_f32 v{S+i}, v{CS}, v{S+i}')
            for i in range(b, b + 8): o.append(f'v_cvt_pk_bf16_f32 v{S+i}, 0, v{S+i}')
        return o
    def exps():
        o = []
        for b in range(0, 32, 8):
            for i in range(b, b + 8): o.append(f'v_fma_f32 v{PE+i}, v{S+i}, v{CL}, -v{MN}')
            for i in range(b, b + 8): o.append(f'v_exp_f32 v{PE+i}, v{PE+i}')
            if b >= 8:
                for i in range(b - 8, b):
                    c = i & 3
                    if i < 4: o.append(f'v_mov_b32 v{SUM+c}, v{PE+i}')
                    else: o.append(f'v_add_f32 v{SUM+c}, v{SUM+c}, v{PE+i}')
        for i in range(24, 32):
            o.append(f'v_add_f32 v{SUM+(i&3)}, v{SUM+(i&3)}, v{PE+i}')
        o.append(f'v_add_f32 v{SUM}, v{SUM}, v{SUM+1}')
        o.append(f'v_add_f32 v{SUM+2}, v{SUM+2}, v{SUM+3}')
        o.append(f'v_add_f32 v{SUM}, v{SUM}, v{SUM+2}')
        return o
    def valu():
        o = exps()
        valu.cnt += 1
        lab = L('nr%d' % valu.cnt)
        o.append(f'v_cmp_nge_f32 vcc, v{CT}, v{SUM}')
        o.append(f's_cbranch_vccz {lab}')
        for st in range(3):
            for c in range(4):
                b = S + 8 * c
                if st == 0: o.append(f'v_max3_f32 v{T+c}, v{b}, v{b+1}, v{b+2}')
                else: o.append(f'v_max3_f32 v{T+c}, v{T+c}, v{b+1+2*st}, v{b+2+2*st}')
        o.append(f'v_max3_f32 v{T}, v{T}, v{S+7}, v{S+15}')
        o.append(f'v_max3_f32 v{T+2}, v{T+2}, v{S+23}, v{S+31}')
        o.append(f'v_max3_f32 v{T}, v{T}, v{T+1}, v{T+2}')
        o.append(f'v_max3_f32 v{T}, v{T}, v{T+3}, v{M}')
        o.append(f'v_mov_b32 v{T+1}, v{T}')
        o.append(f'v_permlane32_swap_b32 v{T}, v{T+1}')
        o.append(f'v_max_f32 v{T}, v{T}, v{T+1}')
        o.append(f'v_mul_f32 v{MN}, v{CL}, v{T}')
        o.append(f'v_fma_f32 v{T+1}, v{M}, v{CL}, -v{MN}')
        o.append(f'v_exp_f32 v{AL}, v{T+1}')
        o.append(f'v_mov_b32 v{M}, v{T}')
        o.append(f'v_mul_f32 v{LS}, v{AL}, v{LS}')
        for i in range(64): o.append(f'v_mul_f32 v{O+i}, v{AL}, v{O+i}')
        o += exps()
        o.append(f'{lab}:')
        for i in range(0, 32, 2): o.append(f'v_cvt_pk_bf16_f32 v{P+(i>>1)}, v{PE+i}, v{PE+i+1}')
        o.append(f'v_add_f32 v{LS}, v{LS}, v{SUM}')
        return o
    valu.cnt = 0
    def valuR_old():
        o = []
        for b in range(0, 32, 8):
            for i in range(b, b + 8): o.append(f'v_cvt_pk_bf16_f32 v{S+i}, 0, v{S+i}')
            for i in range(b, b + 8): o.append(f'v_mul_f32 v{S+i}, v{CS}, v{S+i}')
            for i in range(b, b + 8): o.append(f'v_cvt_pk_bf16_f32 v{S+i}, 0, v{S+i}')
        for st in range(3):
            for c in range(4):
                b = S + 8 * c
                if st == 0: o.append(f'v_max3_f32 v{T+c}, v{b}, v{b+1}, v{b+2}')
                else: o.append(f'v_max3_f32 v{T+c}, v{T+c}, v{b+1+2*st}, v{b+2+2*st}')
        o.append(f'v_max3_f32 v{T}, v{T}, v{S+7}, v{S+15}')
        o.append(f'v_max3_f32 v{T+2}, v{T+2}, v{S+23}, v{S+31}')
        o.append(f'v_max3_f32 v{T}, v{T}, v{T+1}, v{T+2}')
        o.append(f'v_max_f32 v{T}, v{T}, v{T+3}')
        return o
    def valu_old():
        o = []
        o.append(f'v_mov_b32 v{T+1}, v{T}')
        o.append(f'v_permlane32_swap_b32 v{T}, v{T+1}')
        o.append(f'v_max_f32 v{T}, v{T}, v{T+1}')
        o.append(f'v_sub_f32 v{T+1}, v{T}, v{M}')
        o.append(f'v_cmp_lt_f32 vcc, v{CT}, v{T+1}')
        valu_old.cnt += 1
        lab = L('nr%d' % valu_old.cnt)
        o.append(f's_cbranch_vccz {lab}')
        o.append(f'v_max_f32 v{T}, v{T}, v{M}')
        o.append(f'v_mul_f32 v{MN}, v{CL}, v{T}')
        o.append(f'v_fma_f32 v{T+1}, v{M}, v{CL}, -v{MN}')
        o.append(f'v_exp_f32 v{AL}, v{T+1}')
        o.append(f'v_mov_b32 v{M}, v{T}')
        o.append(f'v_mul_f32 v{LS}, v{AL}, v{LS}')
        for i in range(64): o.append(f'v_mul_f32 v{O+i}, v{AL}, v{O+i}')
        o.append(f'{lab}:')
        for b in range(0, 32, 8):
            for i in range(b, b + 8): o.append(f'v_fma_f32 v{S+i}, v{S+i}, v{CL}, -v{MN}')
            for i in range(b, b + 8): o.append(f'v_exp_f32 v{S+i}, v{S+i}')
            if b >= 8:
                for i in range(b - 8, b):
                    c = i & 3
                    if i < 4: o.append(f'v_mov_b32 v{SUM+c}, v{S+i}')
                    else: o.append(f'v_add_f32 v{SUM+c}, v{SUM+c}, v{S+i}')
                for i in range(b - 8, b, 2): o.append(f'v_cvt_pk_bf16_f32 v{P+(i>>1)}, v{S+i}, v{S+i+1}')
        for i in range(24, 32):
            o.append(f'v_add_f32 v{SUM+(i&3)}, v{SUM+(i&3)}, v{S+i}')
        for i in range(24, 32, 2): o.append(f'v_cvt_pk_bf16_f32 v{P+(i>>1)}, v{S+i}, v{S+i+1}')
        o.append(f'v_add_f32 v{SUM}, v{SUM}, v{SUM+1}')
        o.append(f'v_add_f32 v{SUM+2}, v{SUM+2}, v{SUM+3}')
        o.append(f'v_add_f32 v{SUM}, v{SUM}, v{SUM+2}')
        o.append(f'v_add_f32 v{LS}, v{LS}, v{SUM}')
        return o
    valu_old.cnt = 0
    if 'newmax' not in XF:
        NV = 224
        valuR = valuR_old; valu = valu_old
        k(f'v_mov_b32 v{CT}, 0x41800000')
    def rescale(db):
        return []
        return [f'v_mul_f32 v{O+db*16+i}, v{AL}, v{O+db*16+i}' for i in range(16)]

    PF = 4
    def mlist(kidx):
        seq = []
        if kidx < NT:
            for n in range(16): seq.append((qk(n), kread(kidx % 4, n), ('qk', n)))
        if kidx >= 1:
            for n in range(16): seq.append((pv(n), vread((kidx - 1) % 4, n), ('pv', n)))
        return seq
    def prefetch(kidx):
        for (m, rd, tag) in mlist(kidx)[:PF]:
            for x in rd: k(x)
    def tick(acc):
        if 'phase' not in XF: return
        k(f'''
        s_memtime s[74:75]
        s_waitcnt lgkmcnt(0)
        s_sub_u32 s76, s74, s72
        s_add_u32 s{acc}, s{acc}, s76
        s_mov_b32 s72, s74
        ''')
    def mphase(kidx, prefetched):
        tick(77)
        if 'noprio' not in XF: k('s_setprio 3')
        _mphase(kidx, prefetched)
        if 'noprio' not in XF: k('s_setprio 0')
        tick(70)
    def _mphase(kidx, prefetched):
        seq = mlist(kidx)
        if not prefetched: prefetch(kidx)
        n = len(seq)
        vr = valuR()
        for i, (m, rd, tag) in enumerate(seq):
            if tag[0] == 'pv' and tag[1] == 0:
                for x in rescale(0): k(x)
            cnt = sum(len(seq[j][1]) for j in range(i + 1, min(i + PF, n)))
            k(f's_waitcnt lgkmcnt({cnt})')
            k(m)
            if i + PF < n:
                for x in seq[i + PF][1]: k(x)
            if 1 <= kidx < NT and i in (1, 5, 9, 13):
                j = (i - 1) // 4
                if j == 0:
                    k(f'''
                    s_add_u32 s52, s46, {vsl(kidx + 1)}
                    ''')
                k(f'''
                s_add_u32 m0, s52, {j*1024}
                s_nop 0
                buffer_load_dwordx4 v{DM+j}, s[12:15], s47 offen lds
                ''')
                if j == 3:
                    k('s_add_u32 s47, s47, 16384')
                    if kidx <= 4:
                        k(f'''
                        s_cmp_lg_u32 s35, 0
                        s_cbranch_scc1 {L('pf%d' % kidx)}
                        buffer_load_dword v{PFD}, v{PFA}, s[16:19], 0 offen offset:0
                        v_add_u32 v{PFA}, 4096, v{PFA}
                        {L('pf%d' % kidx)}:
                        ''')
            if tag[0] == 'pv' and kidx < NT:
                lo = tag[1] * len(vr) // 16; hi = (tag[1] + 1) * len(vr) // 16
                for x in vr[lo:hi]: k(x)
        if kidx == 0:
            for x in vr: k(x)
    def vphase(kidx):
        dma_slot = None
        va = valu()
        tick(77)
        for x in va: k(x)
        prefetch(kidx + 1)
        tick(71)
        k('s_waitcnt vmcnt(%d)' % (0 if kidx == NT - 1 else 4))
        k('s_barrier')
    vphase.cnt = 0

    GA = KF; GAb = KF + 4; GB = VF; GBb = VF + 2; GD = VF + 4
    def XFr(st): return P + 4 * st
    def WFr(st, b): return S + 16 * st + 4 * b
    k(f'''
    v_and_b32 v{T}, 31, v0
    v_lshrrev_b32 v{T+1}, 5, v0
    v_bfe_u32 v{T+2}, v{T}, 1, 3
    v_xor_b32 v{T+2}, v{T+1}, v{T+2}
    v_lshlrev_b32 v{T+2}, 4, v{T+2}
    v_lshl_add_u32 v{T+2}, v{T}, 7, v{T+2}
    s_lshl_b32 s37, s34, 12
    v_add_u32 v{GAb}, s37, v{T+2}
    v_xor_b32 v{GAb+1}, 32, v{GAb}
    v_xor_b32 v{GAb+2}, 64, v{GAb}
    v_xor_b32 v{GAb+3}, 96, v{GAb}
    v_and_b32 v{T+2}, 15, v0
    v_lshrrev_b32 v{T+3}, 2, v{T+2}
    v_lshl_add_u32 v{T+4}, v{T+1}, 3, v{T+3}
    v_lshlrev_b32 v{T+4}, 7, v{T+4}
    v_bfe_u32 v{T+5}, v0, 4, 1
    v_and_b32 v{T+6}, 2, v{T+3}
    v_xor_b32 v{T+5}, v{T+5}, v{T+6}
    v_lshl_add_u32 v{T+4}, v{T+5}, 5, v{T+4}
    v_and_b32 v{T+5}, 1, v{T+2}
    v_lshl_add_u32 v{T+4}, v{T+5}, 4, v{T+4}
    v_bfe_u32 v{T+5}, v{T+2}, 1, 1
    v_lshl_add_u32 v{T+4}, v{T+5}, 3, v{T+4}
    v_add_u32 v{GBb}, 32768, v{T+4}
    v_xor_b32 v{GBb+1}, 64, v{GBb}
    v_lshrrev_b32 v{T+2}, 3, v0
    v_and_b32 v{T+3}, 7, v0
    v_lshrrev_b32 v{T+4}, 4, v0
    s_lshl_b32 s37, s36, 8
    s_lshl_b32 s38, s34, 5
    s_add_u32 s37, s37, s38
    ''')
    for a in range(4):
        k(f'''
        v_add_u32 v{T+5}, {(4*a)&7}, v{T+4}
        v_and_b32 v{T+5}, 7, v{T+5}
        v_xor_b32 v{T+5}, v{T+3}, v{T+5}
        v_lshlrev_b32 v{T+5}, 4, v{T+5}
        v_add_u32 v{T+6}, s37, v{T+2}
        v_add_u32 v{T+6}, {8*a}, v{T+6}
        v_lshl_add_u32 v{GD+a}, v{T+6}, 11, v{T+5}
        ''')
    k(f'''
    s_and_b32 s37, s34, 3
    s_lshl_b32 s37, s37, 4
    s_lshl_b32 s38, s33, 8
    s_lshl_b32 s39, s49, 7
    s_add_u32 s38, s38, s39
    v_and_b32 v{T+5}, 1, v{T+4}
    v_lshlrev_b32 v{T+5}, 1, v{T+5}
    v_lshrrev_b32 v{T+6}, 1, v{T+3}
    v_xor_b32 v{T+5}, v{T+6}, v{T+5}
    v_lshlrev_b32 v{T+5}, 5, v{T+5}
    v_and_b32 v{T+6}, 1, v{T+3}
    v_lshl_add_u32 v{T+5}, v{T+6}, 4, v{T+5}
    v_add_u32 v{T+5}, s38, v{T+5}
    ''')
    for b in range(2):
        k(f'''
        v_add_u32 v{T+6}, s37, v{T+2}
        v_add_u32 v{T+6}, {8*b}, v{T+6}
        v_lshl_add_u32 v{GD+4+b}, v{T+6}, 13, v{T+5}
        ''')
    k(f'''
    s_lshl_b32 s90, s34, 12
    s_lshl_b32 s91, s34, 11
    s_add_u32 s91, s91, 32768
    ''')
    def gdma(st):
        sl = (st % 3) * STG
        k(f's_mov_b32 s92, {st*128}')
        k(f's_mov_b32 s93, {st*64*8192}')
        for a in range(4):
            k(f'''
            s_add_u32 m0, s90, {sl + a*1024}
            s_nop 0
            buffer_load_dwordx4 v{GD+a}, s[8:11], s92 offen lds
            ''')
        for b in range(2):
            k(f'''
            s_add_u32 m0, s91, {sl + b*1024}
            s_nop 0
            buffer_load_dwordx4 v{GD+4+b}, s[84:87], s93 offen lds
            ''')
    def gaddr(st):
        sl = (st % 3) * STG
        for i in range(4): k(f'v_add_u32 v{GA+i}, {sl}, v{GAb+i}')
        for i in range(2): k(f'v_add_u32 v{GB+i}, {sl}, v{GBb+i}')
    def greads(ks, st):
        o = [f'ds_read_b128 v[{XFr(st)}:{XFr(st)+3}], v{GA+ks}']
        for b in range(4):
            for x in range(2):
                r = WFr(st, b) + 2 * x
                o.append(f'ds_read_b64_tr_b16 v[{r}:{r+1}], v{GB+(b&1)} offset:{(b>>1)*8192 + (16*ks+4*x)*128}')
        return o
    def gmf(st, first):
        o = []
        for b in range(4):
            d = O + 16 * b
            c = '0' if first else f'v[{d}:{d+15}]'
            o.append(f'v_mfma_f32_32x32x16_bf16 v[{d}:{d+15}], v[{WFr(st,b)}:{WFr(st,b)+3}], v[{XFr(st)}:{XFr(st)+3}], {c}')
        return o
    k(f'''
    s_cmp_eq_u32 s49, 0
    s_cbranch_scc1 {L("gp0")}
    ''')
    dma(0)
    k(f'{L("gp0")}:')
    gdma(0); gdma(1); gdma(2)
    k('s_waitcnt vmcnt(12)')
    k('s_barrier')
    gaddr(0)
    for x in greads(0, 0): k(x)
    NG = 16
    for st in range(NG):
        for ks in range(4):
            k('s_waitcnt lgkmcnt(0)')
            rd = []
            if ks < 3:
                rd = greads(ks + 1, (ks + 1) & 1)
            elif st < NG - 1:
                k(f's_waitcnt vmcnt({6 if st + 2 < NG else 0})')
                k('s_barrier')
                gaddr(st + 1)
                rd = greads(0, 0)
            mf = gmf(ks & 1, st == 0 and ks == 0)
            for i, m in enumerate(mf):
                k(m)
                for x in rd[i * 3:(i + 1) * 3 if i < 3 else None]: k(x)
            if ks == 3 and st + 3 < NG: gdma(st + 3)
            if ks == 3 and st == NG - 2:
                k(f'''
                s_cmp_eq_u32 s49, 0
                s_cbranch_scc1 {L("gp1")}
                ''')
                dma(1); dma(2); dma(3)
                k(f'''
                s_branch {L("gp2")}
                {L("gp1")}:
                ''')
                dma(0); dma(1)
                k(f'{L("gp2")}:')
    for b in range(4):
        for jj in range(2):
            for e in range(4):
                a = O + 16 * b + 8 * jj + 2 * e
                k(f'v_cvt_pk_bf16_f32 v{Q + 4*(2*b+jj) + e}, v{a}, v{a+1}')
    for i in range(64):
        k(f'v_mov_b32 v{O+i}, 0')
    k(f'''
    s_cmp_eq_u32 s49, 0
    s_cbranch_scc1 {L("go")}
    s_waitcnt vmcnt(8)
    s_barrier
    {L("go")}:
    ''')
    if 'marks' in XF:
        k('s_memtime s[80:81]\ns_waitcnt lgkmcnt(0)')
    mphase(0, False)
    k('s_barrier')
    vphase(0)
    k('s_mov_b32 s35, 0')
    k(f'{L("loop")}:')
    for kk in range(1, 5):
        mphase(kk, True)
        k('s_barrier')
        vphase(kk)
    k(f'''
    s_add_u32 s35, s35, 1
    s_cmp_lt_u32 s35, 7
    s_cbranch_scc1 {L("loop")}
    ''')
    for kk in range(29, 32):
        mphase(kk, True)
        k('s_barrier')
        vphase(kk)
    mphase(32, True)
    if 'marks' in XF:
        k('s_memtime s[82:83]\ns_waitcnt lgkmcnt(0)')
    k(f'''
    s_cmp_lg_u32 s49, 0
    s_cbranch_scc1 {L("fin")}
    s_waitcnt vmcnt(0)
    s_barrier
    {L("fin")}:
    v_mov_b32 v{T+1}, v{LS}
    v_permlane32_swap_b32 v{LS}, v{T+1}
    v_add_f32 v{LS}, v{LS}, v{T+1}
    v_rcp_f32 v{T+2}, v{LS}
    v_and_b32 v{T}, 31, v0
    v_lshrrev_b32 v{T+1}, 5, v0
    s_lshl_b32 s37, s36, 8
    s_lshl_b32 s38, s34, 5
    s_add_u32 s37, s37, s38
    v_add_u32 v{T+3}, s37, v{T}
    v_lshlrev_b32 v{T+3}, 13, v{T+3}
    s_lshl_b32 s38, s33, 8
    v_lshl_add_u32 v{T+4}, v{T+1}, 3, s38
    v_add_u32 v{T+3}, v{T+3}, v{T+4}
    v_fma_f32 v{T+4}, -v{T+2}, v{LS}, 1.0
    v_fma_f32 v{T+2}, v{T+4}, v{T+2}, v{T+2}
    ''')
    k(f'''
    s_mul_i32 s38, s34, 8704
    s_add_u32 s38, s38, {90*1024}
    v_mul_u32_u24 v{T+5}, 272, v{T}
    v_lshl_add_u32 v{T+5}, v{T+1}, 3, v{T+5}
    v_add_u32 v{T+5}, s38, v{T+5}
    v_lshrrev_b32 v{T+6}, 4, v0
    v_and_b32 v{T+7}, 15, v0
    v_add_u32 v{T+3}, s37, v{T+6}
    v_lshlrev_b32 v{T+3}, 13, v{T+3}
    s_lshl_b32 s39, s33, 8
    v_lshl_add_u32 v{T+4}, v{T+7}, 4, s39
    v_add_u32 v{T+3}, v{T+3}, v{T+4}
    v_mul_u32_u24 v{T+6}, 272, v{T+6}
    v_lshl_add_u32 v{T+6}, v{T+7}, 4, v{T+6}
    v_add_u32 v{T+6}, s38, v{T+6}
    ''')
    for db in range(4):
        for g in range(4):
            r = O + db * 16 + g * 4
            for e in range(4):
                k(f'v_mul_f32 v{r+e}, v{T+2}, v{r+e}')
            k(f'''
            v_cvt_pk_bf16_f32 v{r}, v{r}, v{r+1}
            v_cvt_pk_bf16_f32 v{r+1}, v{r+2}, v{r+3}
            ds_write_b64 v{T+5}, v[{r}:{r+1}] offset:{db*64+g*16}
            ''')
    k('s_waitcnt lgkmcnt(0)')
    for i in range(8):
        k(f'ds_read_b128 v[{O+4*i}:{O+4*i+3}], v{T+6} offset:{i*4*272}')
    for i in range(8):
        k(f's_waitcnt lgkmcnt({7-i})')
        k(f's_mov_b32 s39, {i*4*8192}')
        k(f'buffer_store_dwordx4 v[{O+4*i}:{O+4*i+3}], v{T+3}, s[20:23], s39 offen')
    if 'stamp' in XF:
        k(f'''
        s_memtime s[64:65]
        s_memrealtime s[66:67]
        s_waitcnt lgkmcnt(0)
        s_sub_u32 s64, s64, s60
        s_sub_u32 s66, s66, s62
        s_mov_b32 s58, 256
        s_mov_b32 s59, 0x00020000
        v_mov_b32 v2, s64
        v_mov_b32 v3, s66
        ''')
        if 'marks' in XF:
            k('''
            s_sub_u32 s80, s80, s60
            s_sub_u32 s82, s82, s60
            s_lshl_b32 s80, s80, 0
            v_mov_b32 v3, s82
            ''')
            k('v_mov_b32 v2, s80') if 'marks1' in XF else None
        if 'phase' in XF:
            k('''
            v_mov_b32 v2, s70
            v_mov_b32 v3, s71
            ''')
        k(f'''
        s_lshl_b32 s64, s34, 3
        v_mov_b32 v1, s64
        s_cmp_lg_u32 s2, 100
        s_cbranch_scc1 {L('end')}
        v_cmp_eq_u32 vcc, 0, v0
        s_and_saveexec_b64 s[68:69], vcc
        buffer_store_dwordx2 v[2:3], v1, s[56:59], 0 offen
        ''')
    k(f'''
    {L('end')}:
    s_endpgm
    ''')
    return k, dict(vgpr=NV, sgpr=96, grid=256, block=512, lds=160 * 1024)
```

```python
from asmlib import Kernel
from gen import *

def gen_gemmw(name, cfg):
    K = cfg['K']; lda = cfg['lda']; ldb = 2048; ldo = 2048
    NS = K // 64; NSL = 6; ST = 24576
    BM = 128; MB = 4; NB = 2
    OST = 144
    OBASE = ((NS - 1 + 2) % NSL) * ST
    k = Kernel(name)
    L = lambda s: f'L_{name}_{s}'
    k(f'''
    s_cmp_ge_u32 s2, 256
    s_cbranch_scc1 {L('end')}
    s_load_dwordx2 s[4:5], s[0:1], {KA['ws']}
    s_load_dwordx2 s[6:7], s[0:1], {cfg['B']}
    s_load_dwordx2 s[42:43], s[0:1], {KA['x']}
    s_load_dwordx2 s[44:45], s[0:1], {KA['out']}
    v_lshrrev_b32 v1, 6, v0
    v_and_b32 v0, 63, v0
    s_nop 0
    v_readfirstlane_b32 s34, v1
    s_and_b32 s3, s2, 7
    s_lshr_b32 s35, s2, 3
    s_and_b32 s32, s3, 3
    s_lshl_b32 s32, s32, 2
    s_and_b32 s36, s35, 3
    s_add_u32 s32, s32, s36
    s_lshr_b32 s33, s3, 2
    s_lshl_b32 s33, s33, 3
    s_lshr_b32 s36, s35, 2
    s_add_u32 s33, s33, s36
    s_lshl_b32 s32, s32, 7
    s_waitcnt lgkmcnt(0)
    ''')
    srd(k, 8, 4, 5, 2048 * lda, cfg['Aoff'])
    srd(k, 12, 6, 7, K * ldb)
    if cfg['out_is_out']: srd(k, 20, 44, 45, 2048 * ldo)
    else: srd(k, 20, 4, 5, 2048 * ldo, cfg['Ooff'])
    if cfg['res_from_ws']: srd(k, 24, 4, 5, 2048 * 2048, cfg['Roff'])
    else: srd(k, 24, 42, 43, 2048 * 2048)
    srd(k, 28, 4, 5, 6144 * 4, WS_MOD)
    k(f'''
    s_cmp_ge_u32 s34, 4
    s_cbranch_scc1 {L('loader')}
    ''')
    ACC = 4
    F0 = ACC + 32; FS = 24
    def fA(st, mb): return F0 + st * FS + mb * 4
    def fB(st, nb): return F0 + st * FS + 16 + nb * 4
    AD = F0 + 2 * FS
    vA = [AD, AD + 1]; vB = [AD + 2, AD + 3]; vAb = [AD + 4, AD + 5]; vBb = [AD + 6, AD + 7]
    T0 = AD + 8
    E0 = T0 + 12
    vO = T0; vW = T0 + 8
    k(f'''
    s_and_b32 s36, s34, 1
    s_lshr_b32 s37, s34, 1
    v_and_b32 v{T0}, 15, v0
    v_lshrrev_b32 v{T0+1}, 4, v0
    v_lshrrev_b32 v{T0+2}, 1, v{T0}
    v_xor_b32 v{T0+2}, v{T0+1}, v{T0+2}
    v_lshlrev_b32 v{T0+2}, 4, v{T0+2}
    v_lshl_add_u32 v{T0+2}, v{T0}, 7, v{T0+2}
    s_lshl_b32 s38, s36, 13
    v_add_u32 v{vAb[0]}, s38, v{T0+2}
    v_xor_b32 v{vAb[1]}, 64, v{vAb[0]}
    v_lshrrev_b32 v{T0+2}, 3, v{T0}
    v_and_b32 v{T0+3}, 1, v{T0+1}
    v_lshl_or_b32 v{T0+2}, v{T0+3}, 1, v{T0+2}
    s_lshl_b32 s38, s37, 1
    v_xor_b32 v{T0+2}, s38, v{T0+2}
    v_lshlrev_b32 v{T0+2}, 5, v{T0+2}
    v_and_b32 v{T0+3}, 3, v{T0}
    v_lshl_add_u32 v{T0+2}, v{T0+3}, 3, v{T0+2}
    v_lshrrev_b32 v{T0+3}, 2, v{T0}
    v_lshl_add_u32 v{T0+3}, v{T0+1}, 3, v{T0+3}
    v_lshl_add_u32 v{vBb[0]}, v{T0+3}, 7, v{T0+2}
    v_add_u32 v{vBb[0]}, 16384, v{vBb[0]}
    v_xor_b32 v{vBb[1]}, 32, v{vBb[0]}
    v_mov_b32 v{vA[0]}, v{vAb[0]}
    v_mov_b32 v{vA[1]}, v{vAb[1]}
    v_mov_b32 v{vB[0]}, v{vBb[0]}
    v_mov_b32 v{vB[1]}, v{vBb[1]}
    ''')
    for i in range(32): k(f'v_mov_b32 v{ACC+i}, 0')
    k(f'''
    v_and_b32 v{T0+1}, 15, v0
    v_lshrrev_b32 v{T0+2}, 4, v0
    s_lshl_b32 s46, s36, 6
    s_add_u32 s46, s46, s32
    v_add_u32 v{T0+1}, s46, v{T0+1}
    v_lshlrev_b32 v{T0+1}, 11, v{T0+1}
    s_lshl_b32 s46, s33, 7
    s_lshl_b32 s47, s37, 6
    s_add_u32 s46, s46, s47
    v_lshl_add_u32 v{T0+2}, v{T0+2}, 3, s46
    v_add_u32 v{vO}, v{T0+1}, v{T0+2}
    v_and_b32 v{T0+1}, 15, v0
    s_lshl_b32 s46, s36, 6
    v_add_u32 v{T0+1}, s46, v{T0+1}
    v_mul_u32_u24 v{T0+1}, {OST}, v{T0+1}
    v_lshrrev_b32 v{T0+3}, 4, v0
    s_lshl_b32 s47, s37, 6
    s_add_u32 s47, s47, {OBASE}
    v_lshl_add_u32 v{T0+3}, v{T0+3}, 3, s47
    v_add_u32 v{vW}, v{T0+1}, v{T0+3}
    v_lshlrev_b32 v{T0+3}, 1, v{T0+2}
    s_mov_b32 s46, {cfg["gidx"]*4096}
    ''')
    for j in range(NB):
        k(f'buffer_load_dwordx4 v[{E0+j*4}:{E0+j*4+3}], v{T0+3}, s[28:31], s46 offen offset:{j*64}')
    for mb in range(MB):
        k(f's_mov_b32 s46, {mb*16*ldo}')
        for j in range(NB):
            r = E0 + 8 + (mb * NB + j) * 2
            k(f'buffer_load_dwordx2 v[{r}:{r+1}], v{vO}, s[24:27], s46 offen offset:{j*32}')
    def reads(sb, st):
        out = []
        for mb in range(MB):
            out.append(f'ds_read_b128 v[{fA(st,mb)}:{fA(st,mb)+3}], v{vA[sb]} offset:{mb*2048}')
        for j in range(NB):
            for h in range(2):
                out.append(f'ds_read_b64_tr_b16 v[{fB(st,j)+2*h}:{fB(st,j)+2*h+1}], v{vB[j]} offset:{(32*sb+4*h)*128}')
        return out
    def mfmas(st):
        out = []
        for mb in range(MB):
            for nb in range(NB):
                a = ACC + (mb * NB + nb) * 4
                out.append(f'v_mfma_f32_16x16x32_bf16 v[{a}:{a+3}], v[{fB(st,nb)}:{fB(st,nb)+3}], v[{fA(st,mb)}:{fA(st,mb)+3}], v[{a}:{a+3}]')
        return out
    def inter(mf, rd):
        for i, m in enumerate(mf):
            k(m)
            for x in rd[2*i:2*i+2]: k(x)
    k('s_mov_b32 s39, 0\ns_mov_b32 s35, 0\ns_barrier')
    for r in reads(0, 0): k(r)
    def stage_body(last):
        k('s_waitcnt lgkmcnt(0)')
        inter(mfmas(0), reads(1, 1))
        k('s_waitcnt lgkmcnt(0)')
        if not last:
            k(f'''
            s_barrier
            s_add_u32 s39, s39, {ST}
            s_cmp_ge_u32 s39, {NSL*ST}
            s_cselect_b32 s39, 0, s39
            v_add_u32 v{vA[0]}, s39, v{vAb[0]}
            v_add_u32 v{vA[1]}, s39, v{vAb[1]}
            v_add_u32 v{vB[0]}, s39, v{vBb[0]}
            v_add_u32 v{vB[1]}, s39, v{vBb[1]}
            ''')
            inter(mfmas(1), reads(0, 0))
        else:
            for x in mfmas(1): k(x)
    k(f'{L("cloop")}:')
    stage_body(False)
    k(f'''
    s_add_u32 s35, s35, 1
    s_cmp_lt_u32 s35, {NS-1}
    s_cbranch_scc1 {L("cloop")}
    ''')
    stage_body(True)
    t = T0 + 4
    k('s_mov_b32 s47, 0xffff0000')
    k('s_waitcnt vmcnt(0)')
    for mb in range(MB):
        for j in range(NB):
            a = ACC + (mb * NB + j) * 4
            r = E0 + 8 + (mb * NB + j) * 2
            for e in range(4): rnd(k, a + e, a + e)
            for e in range(4): k(f'v_mul_f32 v{a+e}, v{a+e}, v{E0+j*4+e}')
            for e in range(4): rnd(k, a + e, a + e)
            for e in range(4):
                if e & 1: k(f'v_and_b32 v{t+e}, s47, v{r+(e>>1)}')
                else: k(f'v_lshlrev_b32 v{t+e}, 16, v{r+(e>>1)}')
            for e in range(4): k(f'v_add_f32 v{a+e}, v{a+e}, v{t+e}')
            k(f'''
            v_cvt_pk_bf16_f32 v{a}, v{a}, v{a+1}
            v_cvt_pk_bf16_f32 v{a+1}, v{a+2}, v{a+3}
            ds_write_b64 v{vW}, v[{a}:{a+1}] offset:{mb*16*OST+j*32}
            ''')
    def coop_store():
        k(f'''
        v_lshrrev_b32 v4, 3, v0
        v_and_b32 v5, 7, v0
        s_lshl_b32 s46, s34, 4
        v_add_u32 v4, s46, v4
        v_mul_u32_u24 v6, {OST}, v4
        v_lshl_add_u32 v6, v5, 4, v6
        v_add_u32 v6, {OBASE}, v6
        v_add_u32 v4, s32, v4
        v_lshlrev_b32 v4, 11, v4
        s_lshl_b32 s46, s33, 7
        v_lshl_add_u32 v5, v5, 4, s46
        v_add_u32 v4, v4, v5
        ds_read_b128 v[8:11], v6
        ds_read_b128 v[12:15], v6 offset:{8*OST}
        s_mov_b32 s46, {8*ldo}
        s_waitcnt lgkmcnt(1)
        buffer_store_dwordx4 v[8:11], v4, s[20:23], 0 offen
        s_waitcnt lgkmcnt(0)
        buffer_store_dwordx4 v[12:15], v4, s[20:23], s46 offen
        ''')
    k('s_waitcnt lgkmcnt(0)\ns_barrier')
    coop_store()
    k('s_endpgm')
    NVC = E0 + 24
    k(f'''
    {L("loader")}:
    s_sub_u32 s34, s34, 4
    v_lshrrev_b32 v1, 3, v0
    v_and_b32 v2, 7, v0
    v_lshrrev_b32 v3, 4, v0
    s_lshl_b32 s46, s34, 5
    s_add_u32 s46, s46, s32
    s_mov_b32 s48, {lda}
    ''')
    for a in range(4):
        k(f'''
        v_add_u32 v4, {(4*a)&7}, v3
        v_and_b32 v4, 7, v4
        v_xor_b32 v4, v2, v4
        v_lshlrev_b32 v4, 4, v4
        v_add_u32 v5, s46, v1
        v_add_u32 v5, {8*a}, v5
        v_mul_lo_u32 v5, v5, s48
        v_add_u32 v{8+a}, v5, v4
        ''')
    k(f'''
    s_lshl_b32 s46, s34, 4
    s_lshl_b32 s47, s33, 7
    ''')
    for b in range(2):
        k(f'''
        v_and_b32 v4, 1, v3
        v_or_b32 v4, {b<<1}, v4
        v_lshrrev_b32 v5, 1, v2
        v_xor_b32 v4, v5, v4
        v_lshlrev_b32 v4, 5, v4
        v_and_b32 v5, 1, v2
        v_lshl_add_u32 v4, v5, 4, v4
        v_add_u32 v5, s46, v1
        v_add_u32 v5, {8*b}, v5
        v_lshlrev_b32 v5, 11, v5
        v_add3_u32 v{16+b}, v5, v4, s47
        ''')
    k(f'''
    s_lshl_b32 s50, s34, 12
    s_lshl_b32 s51, s34, 11
    s_add_u32 s51, s51, 16384
    s_mov_b32 s52, 0
    s_mov_b32 s53, 0
    s_mov_b32 s39, 0
    ''')
    def issue():
        for a in range(4):
            k(f'''
            s_add_u32 s54, s39, s50
            s_add_u32 m0, s54, {a*1024}
            s_nop 0
            buffer_load_dwordx4 v{8+a}, s[8:11], s52 offen lds
            ''')
        for b in range(2):
            k(f'''
            s_add_u32 s54, s39, s51
            s_add_u32 m0, s54, {b*1024}
            s_nop 0
            buffer_load_dwordx4 v{16+b}, s[12:15], s53 offen lds
            ''')
        k(f'''
        s_add_u32 s52, s52, 128
        s_add_u32 s53, s53, {64*ldb}
        s_add_u32 s39, s39, {ST}
        s_cmp_ge_u32 s39, {NSL*ST}
        s_cselect_b32 s39, 0, s39
        ''')
    for i in range(NSL): issue()
    k(f'''
    s_waitcnt vmcnt({6*(NSL-1)})
    s_barrier
    s_mov_b32 s35, 0
    {L("lloop")}:
    s_waitcnt vmcnt({6*(NSL-2)})
    s_barrier
    ''')
    issue()
    k(f'''
    s_add_u32 s35, s35, 1
    s_cmp_lt_u32 s35, {NS-NSL}
    s_cbranch_scc1 {L("lloop")}
    ''')
    for r in range(NSL - 1):
        k(f's_waitcnt vmcnt({6*max(0, NSL-2-r)})\ns_barrier')
    k('s_add_u32 s34, s34, 4\ns_barrier')
    coop_store()
    k(f'{L("end")}:\ns_endpgm')
    return k, dict(vgpr=max(NVC, 24), sgpr=64, grid=256, block=512, lds=NSL * ST)
```

```python
from asmlib import Kernel
from gen import *

def gen_gu2():
    name = 'gu_kernel'
    k = Kernel(name)
    L = lambda s: f'L_{name}_{s}'
    lda = 2048; ldb = 7168; NS = 16
    SL = 65536
    ACC = 4
    def acc(mb, mt, nb): return ACC + ((mb * 2 + mt) * 7 + nb) * 4
    FA = ACC + 112
    FB = FA + 16
    VA = FB + 56
    VB = VA + 2
    GD = VB + 4
    T = GD + 4
    NV = T + 8
    k(f'''
    s_cmp_ge_u32 s2, 256
    s_cbranch_scc1 {L('end')}
    s_load_dwordx2 s[4:5], s[0:1], {KA['ws']}
    s_load_dwordx4 s[40:43], s[0:1], {KA['wg']}
    v_lshrrev_b32 v1, 6, v0
    v_and_b32 v0, 63, v0
    s_nop 0
    v_readfirstlane_b32 s34, v1
    s_and_b32 s3, s2, 7
    s_lshr_b32 s35, s2, 3
    s_and_b32 s32, s3, 1
    s_lshl_b32 s32, s32, 2
    s_and_b32 s36, s35, 3
    s_add_u32 s32, s32, s36
    s_lshr_b32 s33, s3, 1
    s_lshl_b32 s33, s33, 3
    s_lshr_b32 s36, s35, 2
    s_add_u32 s33, s33, s36
    s_lshl_b32 s32, s32, 8
    s_waitcnt lgkmcnt(0)
    ''')
    if 'stamp' in GX:
        k('s_memtime s[60:61]\ns_load_dwordx2 s[56:57], s[0:1], 96\ns_waitcnt lgkmcnt(0)')
    srd(k, 8, 4, 5, 2048 * lda, WS_H2)
    srd(k, 20, 4, 5, 2048 * ldb, WS_GU)
    k(f'''
    s_cmp_ge_u32 s34, 4
    s_cselect_b32 s12, s42, s40
    s_cselect_b32 s13, s43, s41
    s_mov_b32 s14, {1024*ldb}
    s_mov_b32 s15, 0x00020000
    v_and_b32 v{T}, 15, v0
    v_lshrrev_b32 v{T+1}, 4, v0
    v_lshrrev_b32 v{T+2}, 1, v{T}
    v_xor_b32 v{T+2}, v{T+1}, v{T+2}
    v_lshlrev_b32 v{T+2}, 4, v{T+2}
    v_lshl_add_u32 v{T+2}, v{T}, 7, v{T+2}
    s_lshl_b32 s38, s34, 12
    v_add_u32 v{VA}, s38, v{T+2}
    v_xor_b32 v{VA+1}, 64, v{VA}
    v_lshrrev_b32 v{T+2}, 3, v{T}
    v_and_b32 v{T+3}, 1, v{T+1}
    v_lshl_or_b32 v{T+2}, v{T+3}, 1, v{T+2}
    v_lshlrev_b32 v{T+2}, 5, v{T+2}
    v_and_b32 v{T+3}, 3, v{T}
    v_lshl_add_u32 v{T+2}, v{T+3}, 3, v{T+2}
    v_lshrrev_b32 v{T+3}, 2, v{T}
    v_lshl_add_u32 v{T+3}, v{T+1}, 3, v{T+3}
    v_lshl_add_u32 v{VB}, v{T+3}, 7, v{T+2}
    v_add_u32 v{VB}, 32768, v{VB}
    v_xor_b32 v{VB+1}, 32, v{VB}
    v_xor_b32 v{VB+2}, 64, v{VB}
    v_xor_b32 v{VB+3}, 96, v{VB}
    v_lshrrev_b32 v{T+2}, 3, v0
    v_and_b32 v{T+3}, 7, v0
    s_lshl_b32 s37, s34, 5
    s_add_u32 s37, s37, s32
    ''')
    for a in range(2):
        k(f'''
        v_add_u32 v{T+5}, {4*a}, v{T+1}
        v_and_b32 v{T+5}, 7, v{T+5}
        v_xor_b32 v{T+5}, v{T+3}, v{T+5}
        v_lshlrev_b32 v{T+5}, 4, v{T+5}
        v_add_u32 v{T+6}, s37, v{T+2}
        v_add_u32 v{T+6}, {8*a}, v{T+6}
        v_lshl_add_u32 v{GD+a}, v{T+6}, 11, v{T+5}
        ''')
    k(f'''
    s_and_b32 s37, s34, 1
    s_lshl_b32 s37, s37, 5
    s_mul_i32 s38, s33, 224
    s_bfe_u32 s39, s34, 0x10001
    s_lshl_b32 s39, s39, 7
    s_add_u32 s38, s38, s39
    s_mov_b32 s48, {ldb}
    ''')
    for b in range(2):
        k(f'''
        v_and_b32 v{T+5}, 1, v{T+1}
        v_or_b32 v{T+5}, {b<<1}, v{T+5}
        v_lshrrev_b32 v{T+6}, 1, v{T+3}
        v_xor_b32 v{T+5}, v{T+6}, v{T+5}
        v_lshlrev_b32 v{T+5}, 5, v{T+5}
        v_and_b32 v{T+6}, 1, v{T+3}
        v_lshl_add_u32 v{T+5}, v{T+6}, 4, v{T+5}
        v_add_u32 v{T+6}, s37, v{T+2}
        v_add_u32 v{T+6}, {8*b}, v{T+6}
        v_mul_lo_u32 v{T+6}, v{T+6}, s48
        v_add3_u32 v{GD+2+b}, v{T+6}, v{T+5}, s38
        ''')
    k(f'''
    s_lshl_b32 s50, s34, 12
    s_lshl_b32 s51, s34, 12
    s_add_u32 s51, s51, 32768
    s_mov_b32 s52, 0
    s_mov_b32 s53, 0
    s_mov_b32 s39, 0
    ''')
    for i in range(112): k(f'v_mov_b32 v{ACC+i}, 0')
    def issue():
        for a in range(4):
            k(f'''
            s_add_u32 s54, s39, s50
            s_add_u32 m0, s54, {a*1024}
            s_add_u32 s55, s52, {(a>>1)*16*lda}
            buffer_load_dwordx4 v{GD+(a&1)}, s[8:11], s55 offen lds
            ''')
        for b in range(4):
            k(f'''
            s_add_u32 s54, s39, s51
            s_add_u32 m0, s54, {b*1024}
            s_add_u32 s55, s53, {(b>>1)*16*ldb}
            buffer_load_dwordx4 v{GD+2+(b&1)}, s[12:15], s55 offen lds
            ''')
        k(f'''
        s_add_u32 s52, s52, 128
        s_add_u32 s53, s53, {64*ldb}
        s_xor_b32 s39, s39, {SL}
        ''')
    def reads(ms):
        sb, mt = ms >> 1, ms & 1
        o = []
        if mt == 0:
            for mb in range(2):
                r = FA + sb * 8 + mb * 4
                o.append(f'ds_read_b128 v[{r}:{r+3}], v{VA+sb} offset:{mb*2048}')
        for nb in range(7):
            for h in range(2):
                r = FB + (ms & 1) * 28 + nb * 4 + 2 * h
                o.append(f'ds_read_b64_tr_b16 v[{r}:{r+1}], v{VB+(nb&3)} offset:{(mt*2+(nb>>2))*8192+(32*sb+4*h)*128}')
        return o
    def mfmas(ms):
        sb, mt = ms >> 1, ms & 1
        o = []
        for nb in range(7):
            for mb in range(2):
                a = acc(mb, mt, nb); b = FB + (ms & 1) * 28 + nb * 4; x = FA + sb * 8 + mb * 4
                o.append(f'v_mfma_f32_16x16x32_bf16 v[{a}:{a+3}], v[{b}:{b+3}], v[{x}:{x+3}], v[{a}:{a+3}]')
        return o
    def inter(mf, rd):
        ri = 0
        for i, m in enumerate(mf):
            k(m)
            want = min(len(rd), (i + 1) * len(rd) // 10 + 1)
            while ri < want: k(rd[ri]); ri += 1
        for x in rd[ri:]: k(x)
    issue(); issue()
    k('s_waitcnt vmcnt(8)\ns_barrier\ns_mov_b32 s35, 0')
    if 'stamp' in GX: k('s_memtime s[62:63]\ns_waitcnt lgkmcnt(0)')
    for x in reads(0): k(x)
    def stage(last, do_issue):
        for ms in range(4):
            k('s_waitcnt lgkmcnt(0)')
            if ms < 3:
                inter(mfmas(ms), reads(ms + 1))
            elif not last:
                k('s_waitcnt vmcnt(0)\ns_barrier')
                for i in range(2): k(f'v_xor_b32 v{VA+i}, {SL}, v{VA+i}')
                for i in range(4): k(f'v_xor_b32 v{VB+i}, {SL}, v{VB+i}')
                mf = mfmas(ms); rd = reads(0)
                inter(mf[:10], rd)
                if do_issue: issue()
                for x in mf[10:]: k(x)
            else:
                for x in mfmas(ms): k(x)
    k(f'{L("loop")}:')
    stage(False, True)
    k(f'''
    s_add_u32 s35, s35, 1
    s_cmp_lt_u32 s35, {NS-2}
    s_cbranch_scc1 {L("loop")}
    ''')
    stage(False, False)
    stage(True, False)
    if 'stamp' in GX: k('s_nop 15\ns_memtime s[64:65]\ns_waitcnt lgkmcnt(0)')
    OST = 240
    t = T + 2
    k(f'''
    v_and_b32 v{T}, 15, v0
    v_lshrrev_b32 v{T+1}, 4, v0
    v_mul_u32_u24 v{T}, {OST}, v{T}
    v_lshl_add_u32 v{T}, v{T+1}, 3, v{T}
    s_mul_i32 s38, s34, {32*OST}
    v_add_u32 v{T}, s38, v{T}
    v_mov_b32 v{T+1}, 0x{LOG2E:x}
    ''')
    for mb in range(2):
        for nb in range(7):
            g = acc(mb, 0, nb); u = acc(mb, 1, nb)
            for e in range(4): rnd(k, g + e, g + e)
            for e in range(4): k(f'v_mul_f32 v{t+e}, v{T+1}, v{g+e}')
            for e in range(4): k(f'v_exp_f32 v{t+e}, -v{t+e}')
            for e in range(4): rnd(k, u + e, u + e)
            for e in range(4): k(f'v_add_f32 v{t+e}, 1.0, v{t+e}')
            for e in range(4): k(f'v_rcp_f32 v{t+e}, v{t+e}')
            for e in range(4): k(f'v_mul_f32 v{g+e}, v{g+e}, v{t+e}')
            for e in range(4): rnd(k, g + e, g + e)
            for e in range(4): k(f'v_mul_f32 v{g+e}, v{g+e}, v{u+e}')
            k(f'''
            v_cvt_pk_bf16_f32 v{g}, v{g}, v{g+1}
            v_cvt_pk_bf16_f32 v{g+1}, v{g+2}, v{g+3}
            ds_write_b64 v{T}, v[{g}:{g+1}] offset:{mb*16*OST+nb*32}
            ''')
    k(f'''
    s_waitcnt lgkmcnt(0)
    s_lshl_b32 s37, s34, 5
    s_add_u32 s37, s37, s32
    s_mul_i32 s39, s33, 224
    s_mov_b32 s46, 4682
    s_mov_b32 s48, {ldb}
    ''')
    for i in range(7):
        a = ACC + 8 * i
        k(f'''
        v_add_u32 v{t}, {64*i}, v0
        v_mul_u32_u24 v{t+1}, s46, v{t}
        v_lshrrev_b32 v{t+1}, 16, v{t+1}
        v_mul_u32_u24 v{t+2}, 14, v{t+1}
        v_sub_u32 v{t+2}, v{t}, v{t+2}
        v_mul_u32_u24 v{t+3}, {OST}, v{t+1}
        v_lshl_add_u32 v{t+3}, v{t+2}, 4, v{t+3}
        v_add_u32 v{t+3}, s38, v{t+3}
        ds_read_b128 v[{a}:{a+3}], v{t+3}
        v_add_u32 v{t+1}, s37, v{t+1}
        v_mul_lo_u32 v{t+1}, v{t+1}, s48
        v_lshl_add_u32 v{t+2}, v{t+2}, 4, s39
        v_add_u32 v{a+4}, v{t+1}, v{t+2}
        ''')
    for i in range(7):
        a = ACC + 8 * i
        k(f's_waitcnt lgkmcnt({6-i})')
        k(f'buffer_store_dwordx4 v[{a}:{a+3}], v{a+4}, s[20:23], 0 offen')
    if 'stamp' in GX:
        k(f'''
        s_waitcnt vmcnt(0)
        s_memtime s[66:67]
        s_waitcnt lgkmcnt(0)
        s_sub_u32 s62, s62, s60
        s_sub_u32 s64, s64, s60
        s_sub_u32 s66, s66, s60
        s_mov_b32 s58, 256
        s_mov_b32 s59, 0x00020000
        v_mov_b32 v4, s62
        v_mov_b32 v5, s64
        v_mov_b32 v6, s66
        v_mov_b32 v7, 0
        s_and_b32 s64, s34, 3
        s_lshl_b32 s64, s64, 4
        v_mov_b32 v1, s64
        s_cmp_lg_u32 s2, 100
        s_cbranch_scc1 {L('end')}
        v_cmp_eq_u32 vcc, 0, v0
        s_and_saveexec_b64 s[68:69], vcc
        buffer_store_dwordx4 v[4:7], v1, s[56:59], 0 offen
        ''')
    k(f'{L("end")}:\ns_endpgm')
    return k, dict(vgpr=NV, sgpr=72, grid=256, block=512, lds=2 * SL)
```

```python
import sys, os
sys.path.insert(0, 'gen')
GX = os.environ.get('GX', '')
from asmlib import Kernel

KA = dict(x=0, k=8, v=16, wq=24, wo=32, bx=40, wg=48, wu=56, wd=64, c=72, wmod=80, out=88, dbg=96, ws=104)
WS_MOD = 0
WS_H1 = 0x100000
WS_X2 = 0x500000
WS_H2 = 0x900000
WS_Q = 0x1000000
WS_O = 0x2000000
WS_GU = 0x3000000
LOG2E = 0x3fb8aa3b
SCALE = 0x3db504f3

def srd(k, d, base_lo, base_hi, nbytes, off=0):
    if off:
        k(f's_add_u32 s{d}, s{base_lo}, 0x{off:x}')
        k(f's_addc_u32 s{d+1}, s{base_hi}, 0')
    else:
        k(f's_mov_b32 s{d}, s{base_lo}')
        k(f's_mov_b32 s{d+1}, s{base_hi}')
    k(f's_mov_b32 s{d+2}, 0x{nbytes:x}')
    k(f's_mov_b32 s{d+3}, 0x00020000')

def rnd(k, d, s):
    k(f'v_cvt_pk_bf16_f32 v{d}, 0, v{s}')

def gen_mod():
    k = Kernel('mod_kernel')
    k(f'''
    s_cmp_ge_u32 s2, 192
    s_cbranch_scc1 L_mod_end
    s_load_dwordx2 s[4:5], s[0:1], {KA['c']}
    s_load_dwordx2 s[6:7], s[0:1], {KA['wmod']}
    s_load_dwordx2 s[8:9], s[0:1], {KA['ws']}
    v_lshrrev_b32 v1, 2, v0
    v_and_b32 v2, 3, v0
    v_lshlrev_b32 v3, 1, v1
    s_mov_b32 s3, 12288
    v_mul_lo_u32 v4, v1, s3
    v_lshl_add_u32 v4, v2, 4, v4
    s_lshl_b32 s3, s2, 6
    v_add_u32 v4, s3, v4
    s_waitcnt lgkmcnt(0)
    ''')
    srd(k, 12, 4, 5, 2048)
    srd(k, 16, 6, 7, 1024 * 6144 * 2)
    srd(k, 20, 8, 9, 6144 * 4, WS_MOD)
    for p in range(16):
        k(f'buffer_load_ushort v{10+p}, v3, s[12:15], 0 offen offset:{p*128}')
    for p in range(16):
        k(f's_mov_b32 s24, {p*786432}')
        k(f'buffer_load_dwordx4 v[{32+4*p}:{35+4*p}], v4, s[16:19], s24 offen')
    k('s_waitcnt vmcnt(16)')
    k(f's_mov_b32 s25, 0x{LOG2E:x}')
    for p in range(16):
        x = 10 + p
        k(f'''
        v_lshlrev_b32 v{x}, 16, v{x}
        v_mul_f32 v5, s25, v{x}
        v_exp_f32 v5, -v5
        v_add_f32 v5, 1.0, v5
        v_rcp_f32 v6, v5
        v_mul_f32 v7, v{x}, v6
        v_fma_f32 v8, -v7, v5, v{x}
        v_fma_f32 v7, v8, v6, v7
        ''')
        rnd(k, x, 7)
    for i in range(8):
        k(f'v_mov_b32 v{100+i}, 0')
    k('s_mov_b32 s26, 0xffff0000')
    for p in range(16):
        k(f's_waitcnt vmcnt({15-p})')
        for i in range(4):
            d = 32 + 4 * p + i
            k(f'''
            v_lshlrev_b32 v5, 16, v{d}
            v_and_b32 v6, s26, v{d}
            v_fmac_f32 v{100+2*i}, v{10+p}, v5
            v_fmac_f32 v{101+2*i}, v{10+p}, v6
            ''')
    k(f'''
    v_lshlrev_b32 v5, 5, v0
    ds_write_b128 v5, v[100:103]
    ds_write_b128 v5, v[104:107] offset:16
    v_and_b32 v6, 31, v0
    v_lshrrev_b32 v7, 5, v0
    v_lshlrev_b32 v8, 10, v7
    v_lshl_add_u32 v8, v6, 2, v8
    s_waitcnt lgkmcnt(0)
    s_barrier
    ''')
    for r in range(8):
        k(f'ds_read_b32 v{10+r}, v8 offset:{r*128}')
    k('s_waitcnt lgkmcnt(0)')
    for r in range(1, 8):
        k(f'v_add_f32 v10, v10, v{10+r}')
    k(f'''
    v_lshlrev_b32 v8, 7, v7
    v_lshl_add_u32 v8, v6, 2, v8
    ds_write_b32 v8, v10 offset:8192
    v_lshlrev_b32 v9, 2, v6
    s_waitcnt lgkmcnt(0)
    s_barrier
    ''')
    for r in range(8):
        k(f'ds_read_b32 v{10+r}, v9 offset:{8192+r*128}')
    k('s_waitcnt lgkmcnt(0)')
    for r in range(1, 8):
        k(f'v_add_f32 v10, v10, v{10+r}')
    rnd(k, 10, 10)
    k(f'''
    s_lshl_b32 s3, s2, 7
    v_add_u32 v9, s3, v9
    v_cmp_gt_u32 vcc, 32, v0
    s_and_saveexec_b64 s[28:29], vcc
    s_cbranch_execz L_mod_end
    buffer_store_dword v10, v9, s[20:23], 0 offen
    L_mod_end:
    s_endpgm
    ''')
    return k, dict(vgpr=112, sgpr=32, grid=192, block=256, lds=16384)

def wave_sum(k, v, t):
    for off in (0x041F, 0x081F, 0x101F, 0x201F, 0x401F):
        k(f'''
        ds_swizzle_b32 v{t}, v{v} offset:0x{off:x}
        s_waitcnt lgkmcnt(0)
        v_add_f32 v{v}, v{v}, v{t}
        ''')
    k(f'''
    v_mov_b32 v{t}, v{v}
    v_permlane32_swap_b32 v{v}, v{t}
    v_add_f32 v{v}, v{v}, v{t}
    ''')

def gen_ln(name, src_from_ws, src_off, shift_idx, scale_idx, dst_off, pf=None):
    k = Kernel(name)
    k(f'''
    s_cmp_ge_u32 s2, 512
    s_cbranch_scc1 L_{name}_end
    s_load_dwordx2 s[4:5], s[0:1], {KA['ws'] if src_from_ws else KA['x']}
    s_load_dwordx2 s[8:9], s[0:1], {KA['ws']}
    s_load_dwordx2 s[28:29], s[0:1], {pf if pf is not None else KA['ws']}
    v_lshrrev_b32 v1, 6, v0
    v_and_b32 v2, 63, v0
    s_lshl_b32 s3, s2, 2
    v_add_u32 v1, s3, v1
    v_lshlrev_b32 v33, 12, v1
    v_lshl_add_u32 v33, v2, 6, v33
    v_lshlrev_b32 v1, 11, v1
    v_lshl_add_u32 v1, v2, 4, v1
    v_lshlrev_b32 v3, 5, v2
    s_waitcnt lgkmcnt(0)
    ''')
    srd(k, 12, 4, 5, 2048 * 2048, src_off)
    srd(k, 16, 8, 9, 6144 * 4, WS_MOD)
    srd(k, 20, 8, 9, 2048 * 2048, dst_off)
    k(f'''
    buffer_load_dwordx4 v[4:7], v1, s[12:15], 0 offen
    buffer_load_dwordx4 v[8:11], v1, s[12:15], 0 offen offset:1024
    s_mov_b32 s24, {shift_idx*4096}
    s_mov_b32 s25, {scale_idx*4096}
    buffer_load_dwordx4 v[48:51], v3, s[16:19], s24 offen
    buffer_load_dwordx4 v[52:55], v3, s[16:19], s24 offen offset:16
    buffer_load_dwordx4 v[56:59], v3, s[16:19], s24 offen offset:2048
    buffer_load_dwordx4 v[60:63], v3, s[16:19], s24 offen offset:2064
    buffer_load_dwordx4 v[64:67], v3, s[16:19], s25 offen
    buffer_load_dwordx4 v[68:71], v3, s[16:19], s25 offen offset:16
    buffer_load_dwordx4 v[72:75], v3, s[16:19], s25 offen offset:2048
    buffer_load_dwordx4 v[76:79], v3, s[16:19], s25 offen offset:2064
    s_mov_b32 s26, 0xffff0000
    s_waitcnt vmcnt(8)
    ''')
    for i in range(8):
        k(f'v_lshlrev_b32 v{16+2*i}, 16, v{4+i}')
        k(f'v_and_b32 v{17+2*i}, s26, v{4+i}')
    k('v_add_f32 v12, v16, v17')
    for i in range(2, 16):
        k(f'v_add_f32 v12, v12, v{16+i}')
    wave_sum(k, 12, 13)
    k('v_mul_f32 v12, 0x3a800000, v12')
    k('v_mov_b32 v14, 0')
    for i in range(16):
        k(f'v_sub_f32 v13, v{16+i}, v12')
        k(f'v_fmac_f32 v14, v13, v13')
    wave_sum(k, 14, 13)
    k('v_mul_f32 v14, 0x3a800000, v14')
    rnd(k, 12, 12)
    rnd(k, 14, 14)
    k('v_add_f32 v14, 0x3727c5ac, v14')
    rnd(k, 14, 14)
    k('v_sqrt_f32 v14, v14')
    rnd(k, 14, 14)
    k('v_rcp_f32 v15, v14')
    k('s_waitcnt vmcnt(0)')
    for i in range(16):
        x = 16 + i
        k(f'v_sub_f32 v{x}, v{x}, v12')
        rnd(k, x, x)
        k(f'''
        v_mul_f32 v13, v{x}, v15
        v_fma_f32 v32, -v13, v14, v{x}
        v_fma_f32 v13, v32, v15, v13
        ''')
        rnd(k, 13, 13)
        k(f'v_add_f32 v32, 1.0, v{64+i}')
        rnd(k, 32, 32)
        k(f'v_mul_f32 v13, v13, v32')
        rnd(k, 13, 13)
        k(f'v_add_f32 v{x}, v13, v{48+i}')
    for i in range(8):
        k(f'v_cvt_pk_bf16_f32 v{4+i}, v{16+2*i}, v{17+2*i}')
    k(f'''
    buffer_store_dwordx4 v[4:7], v1, s[20:23], 0 offen
    buffer_store_dwordx4 v[8:11], v1, s[20:23], 0 offen offset:1024
    ''')
    if pf is not None:
        srd(k, 24, 28, 29, 0x800000)
        k('buffer_load_dword v34, v33, s[24:27], 0 offen')
    k(f'''
    L_{name}_end:
    s_endpgm
    ''')
    return k, dict(vgpr=80, sgpr=32, grid=512, block=256, lds=0)

STG = 49152
def gen_gemm(name, cfg):
    BM, NBS, U, K = cfg['BM'], cfg['NBS'], cfg['U'], cfg['K']
    MB = BM // 32; NB = 2 * NBS; S = 2 * U
    NS = K // (64 * U)
    lda = cfg['lda']; ldb = cfg['ldb']; ldo = cfg['ldo']
    MT, NT = cfg['MT'], cfg['NT']
    nwg = MT * NT
    epi = cfg['epi']
    ROWB = 256 if epi == 'q' else 128
    OST = ROWB + 16
    last_slot = (NS - 1) % 3
    OBASE = STG if last_slot != 1 else 2 * STG
    k = Kernel(name)
    L = lambda s: f'L_{name}_{s}'
    k(f'''
    s_cmp_ge_u32 s2, {nwg}
    s_cbranch_scc1 {L('end')}
    s_load_dwordx2 s[4:5], s[0:1], {KA['ws']}
    s_load_dwordx2 s[6:7], s[0:1], {cfg['B'][0]}
    s_load_dwordx2 s[40:41], s[0:1], {cfg['B'][-1]}
    s_load_dwordx2 s[42:43], s[0:1], {KA['x']}
    s_load_dwordx2 s[44:45], s[0:1], {KA['out']}
    v_lshrrev_b32 v1, 6, v0
    v_and_b32 v0, 63, v0
    s_nop 0
    v_readfirstlane_b32 s34, v1
    s_and_b32 s3, s2, 7
    s_lshr_b32 s35, s2, 3
    ''')
    gx = MT // 4
    gsh = gx.bit_length() - 1
    k(f'''
    s_and_b32 s32, s3, {gx-1}
    s_lshl_b32 s32, s32, 2
    s_and_b32 s36, s35, 3
    s_add_u32 s32, s32, s36
    s_lshr_b32 s33, s3, {gsh}
    s_mul_i32 s33, s33, {NT//(8//gx)}
    s_lshr_b32 s36, s35, 2
    s_add_u32 s33, s33, s36
    s_mul_i32 s32, s32, {BM}
    s_waitcnt lgkmcnt(0)
    ''')
    if 'stamp' in GX:
        k('''
        s_memtime s[60:61]
        s_load_dwordx2 s[56:57], s[0:1], 96
        s_waitcnt lgkmcnt(0)
        ''')
    srd(k, 8, 4, 5, 2048 * lda, cfg['Aoff'])
    srd(k, 12, 6, 7, K * ldb)
    srd(k, 16, 40, 41, K * ldb)
    if epi == 'q':
        srd(k, 20, 4, 5, 2048 * ldo, cfg['Ooff'])
    elif epi == 'gu':
        srd(k, 20, 4, 5, 2048 * ldo, cfg['Ooff'])
    else:
        if cfg['out_is_out']:
            srd(k, 20, 44, 45, 2048 * ldo)
        else:
            srd(k, 20, 4, 5, 2048 * ldo, cfg['Ooff'])
        if cfg['res_from_ws']:
            srd(k, 24, 4, 5, 2048 * 2048, cfg['Roff'])
        else:
            srd(k, 24, 42, 43, 2048 * 2048)
        srd(k, 28, 4, 5, 6144 * 4, WS_MOD)
    k(f'''
    s_cmp_ge_u32 s34, 4
    s_cbranch_scc1 {L('loader')}
    ''')
    ACC = 4
    F0 = ACC + MB * NB * 4
    FS = (MB + NB) * 4
    def fA(st, mb): return F0 + st * FS + mb * 4
    def fB(st, nb): return F0 + st * FS + MB * 4 + nb * 4
    AD = F0 + 2 * FS
    vA = [AD, AD + 1]; vB = [AD + 2, AD + 3]; vAb = [AD + 4, AD + 5]; vBb = [AD + 6, AD + 7]
    T0 = AD + 8
    k(f'''
    s_and_b32 s36, s34, 1
    s_lshr_b32 s37, s34, 1
    v_and_b32 v{T0}, 15, v0
    v_lshrrev_b32 v{T0+1}, 4, v0
    v_lshrrev_b32 v{T0+2}, 1, v{T0}
    v_xor_b32 v{T0+2}, v{T0+1}, v{T0+2}
    v_lshlrev_b32 v{T0+2}, 4, v{T0+2}
    v_lshl_add_u32 v{T0+2}, v{T0}, 7, v{T0+2}
    s_mul_i32 s38, s36, {(BM//2)*128}
    v_add_u32 v{vAb[0]}, s38, v{T0+2}
    v_xor_b32 v{vAb[1]}, 64, v{vAb[0]}
    ''')
    k(f'''
    v_lshrrev_b32 v{T0+2}, 3, v{T0}
    v_and_b32 v{T0+3}, 1, v{T0+1}
    v_lshl_or_b32 v{T0+2}, v{T0+3}, 1, v{T0+2}
    s_lshl_b32 s38, s37, 1
    v_xor_b32 v{T0+2}, s38, v{T0+2}
    v_lshlrev_b32 v{T0+2}, 5, v{T0+2}
    v_and_b32 v{T0+3}, 3, v{T0}
    v_lshl_add_u32 v{T0+2}, v{T0+3}, 3, v{T0+2}
    v_lshrrev_b32 v{T0+3}, 2, v{T0}
    v_lshl_add_u32 v{T0+3}, v{T0+1}, 3, v{T0+3}
    v_lshl_add_u32 v{vBb[0]}, v{T0+3}, 7, v{T0+2}
    v_xor_b32 v{vBb[1]}, 32, v{vBb[0]}
    v_mov_b32 v{vA[0]}, v{vAb[0]}
    v_mov_b32 v{vA[1]}, v{vAb[1]}
    v_mov_b32 v{vB[0]}, v{vBb[0]}
    v_mov_b32 v{vB[1]}, v{vBb[1]}
    ''')
    for i in range(MB * NB * 4):
        k(f'v_mov_b32 v{ACC+i}, 0')
    def a_off(u): return u * BM * 128
    def b_off(u, sub): return 32768 + (u * NBS + sub) * 8192
    def reads(s, st):
        u, sb = s >> 1, s & 1
        out = []
        for mb in range(MB):
            out.append(f'ds_read_b128 v[{fA(st,mb)}:{fA(st,mb)+3}], v{vA[sb]} offset:{a_off(u)+mb*2048}')
        for nb in range(NB):
            sub, j = nb >> 1, nb & 1
            for h in range(2):
                out.append(f'ds_read_b64_tr_b16 v[{fB(st,nb)+2*h}:{fB(st,nb)+2*h+1}], v{vB[j]} offset:{b_off(u,sub)+(32*sb+4*h)*128}')
        return out
    def mfmas(st):
        out = []
        for mb in range(MB):
            for nb in range(NB):
                a = ACC + (mb * NB + nb) * 4
                out.append(f'v_mfma_f32_16x16x32_bf16 v[{a}:{a+3}], v[{fB(st,nb)}:{fB(st,nb)+3}], v[{fA(st,mb)}:{fA(st,mb)+3}], v[{a}:{a+3}]')
        return out
    def interleave(mf, rd, pre=()):
        out = list(pre)
        n = len(mf)
        ri = 0
        for i, m in enumerate(mf):
            out.append(m)
            want = min(len(rd), ((i + 1) * len(rd) * 4 + 3 * n - 1) // (3 * n))
            while ri < want:
                out.append(rd[ri]); ri += 1
        out += rd[ri:]
        return out
    k(f'''
    s_mov_b32 s39, 0
    s_mov_b32 s35, 0
    s_barrier
    ''')
    if 'stamp' in GX: k('s_memtime s[62:63]\ns_waitcnt lgkmcnt(0)')
    for r in reads(0, 0): k(r)
    def stage_body(last):
        for s in range(S):
            k('s_waitcnt lgkmcnt(0)')
            if s < S - 1:
                for x in interleave(mfmas(s & 1), reads(s + 1, (s + 1) & 1)): k(x)
            elif not last:
                k(f'''
                s_barrier
                s_add_u32 s39, s39, {STG}
                s_cmp_ge_u32 s39, {3*STG}
                s_cselect_b32 s39, 0, s39
                v_add_u32 v{vA[0]}, s39, v{vAb[0]}
                v_add_u32 v{vA[1]}, s39, v{vAb[1]}
                v_add_u32 v{vB[0]}, s39, v{vBb[0]}
                v_add_u32 v{vB[1]}, s39, v{vBb[1]}
                ''')
                for x in interleave(mfmas(s & 1), reads(0, 0)): k(x)
            else:
                epi_pre()
                for x in mfmas(s & 1): k(x)
    E0 = F0
    vO = T0
    vW = T0 + 8
    def epi_pre():
        ncols = 64 * (NBS if epi == 'q' else 1)
        k(f'''
        v_and_b32 v{T0+1}, 15, v0
        v_lshrrev_b32 v{T0+2}, 4, v0
        s_mul_i32 s46, s36, {BM//2}
        s_add_u32 s46, s46, s32
        v_add_u32 v{T0+1}, s46, v{T0+1}
        s_mov_b32 s46, {ldo}
        v_mul_lo_u32 v{T0+1}, v{T0+1}, s46
        s_mul_i32 s46, s33, {ncols*2}
        s_lshl_b32 s47, s37, 6
        s_add_u32 s46, s46, s47
        v_lshl_add_u32 v{T0+2}, v{T0+2}, 3, s46
        v_add_u32 v{vO}, v{T0+1}, v{T0+2}
        ''')
        k(f'''
        v_and_b32 v{T0+1}, 15, v0
        s_mul_i32 s46, s36, {BM//2}
        v_add_u32 v{T0+1}, s46, v{T0+1}
        v_mul_u32_u24 v{T0+1}, {OST}, v{T0+1}
        v_lshrrev_b32 v{T0+3}, 4, v0
        s_lshl_b32 s47, s37, 6
        s_add_u32 s47, s47, {OBASE}
        v_lshl_add_u32 v{T0+3}, v{T0+3}, 3, s47
        v_add_u32 v{vW}, v{T0+1}, v{T0+3}
        ''')
        if epi == 'res':
            k(f'v_lshlrev_b32 v{T0+3}, 1, v{T0+2}')
            k(f's_mov_b32 s46, {cfg["gidx"]*4096}')
            for j in range(NB):
                k(f'buffer_load_dwordx4 v[{E0+j*4}:{E0+j*4+3}], v{T0+3}, s[28:31], s46 offen offset:{j*64}')
            for mb in range(MB):
                k(f's_mov_b32 s46, {mb*16*ldo}')
                for j in range(NB):
                    r = E0 + NB * 4 + (mb * NB + j) * 2
                    k(f'buffer_load_dwordx2 v[{r}:{r+1}], v{vO}, s[24:27], s46 offen offset:{j*32}')
    k(f'{L("cloop")}:')
    stage_body(False)
    k(f'''
    s_add_u32 s35, s35, 1
    s_cmp_lt_u32 s35, {NS-1}
    s_cbranch_scc1 {L("cloop")}
    ''')
    stage_body(True)
    if 'stamp' in GX: k('s_nop 15\ns_memtime s[64:65]\ns_waitcnt lgkmcnt(0)')
    t = T0 + 4
    if epi == 'q':
        for mb in range(MB):
            k(f's_mov_b32 s46, {mb*16*ldo}')
            for nb in range(NB):
                a = ACC + (mb * NB + nb) * 4
                sub, j = nb >> 1, nb & 1
                k(f'''
                v_cvt_pk_bf16_f32 v{a}, v{a}, v{a+1}
                v_cvt_pk_bf16_f32 v{a+1}, v{a+2}, v{a+3}
                ds_write_b64 v{vW}, v[{a}:{a+1}] offset:{mb*16*OST+sub*128+j*32}
                ''')
    elif epi == 'gu':
        k(f's_mov_b32 s47, 0x{LOG2E:x}')
        for mb in range(MB):
            k(f's_mov_b32 s46, {mb*16*ldo}')
            for j in range(2):
                g = ACC + (mb * NB + j) * 4
                u = ACC + (mb * NB + 2 + j) * 4
                for e in range(4):
                    rnd(k, g + e, g + e)
                    k(f'''
                    v_mul_f32 v{t}, s47, v{g+e}
                    v_exp_f32 v{t}, -v{t}
                    v_add_f32 v{t}, 1.0, v{t}
                    v_rcp_f32 v{t+1}, v{t}
                    v_mul_f32 v{t+2}, v{g+e}, v{t+1}
                    v_fma_f32 v{t+3}, -v{t+2}, v{t}, v{g+e}
                    v_fma_f32 v{t+2}, v{t+3}, v{t+1}, v{t+2}
                    ''')
                    rnd(k, t + 2, t + 2)
                    rnd(k, u + e, u + e)
                    k(f'v_mul_f32 v{g+e}, v{t+2}, v{u+e}')
                k(f'''
                v_cvt_pk_bf16_f32 v{g}, v{g}, v{g+1}
                v_cvt_pk_bf16_f32 v{g+1}, v{g+2}, v{g+3}
                ds_write_b64 v{vW}, v[{g}:{g+1}] offset:{mb*16*OST+j*32}
                ''')
    else:
        k('s_mov_b32 s47, 0xffff0000')
        k('s_waitcnt vmcnt(0)')
        for mb in range(MB):
            k(f's_mov_b32 s46, {mb*16*ldo}')
            for j in range(NB):
                a = ACC + (mb * NB + j) * 4
                r = E0 + NB * 4 + (mb * NB + j) * 2
                for e in range(4):
                    rnd(k, a + e, a + e)
                    k(f'v_mul_f32 v{a+e}, v{a+e}, v{E0+j*4+e}')
                    rnd(k, a + e, a + e)
                    if e & 1:
                        k(f'v_and_b32 v{t}, s47, v{r+(e>>1)}')
                    else:
                        k(f'v_lshlrev_b32 v{t}, 16, v{r+(e>>1)}')
                    k(f'v_add_f32 v{a+e}, v{a+e}, v{t}')
                k(f'''
                v_cvt_pk_bf16_f32 v{a}, v{a}, v{a+1}
                v_cvt_pk_bf16_f32 v{a+1}, v{a+2}, v{a+3}
                ds_write_b64 v{vW}, v[{a}:{a+1}] offset:{mb*16*OST+j*32}
                ''')
    def coop_store(wreg):
        LPR = ROWB // 16; RPI = 64 // LPR; nins = BM // 8 // RPI
        lsh = LPR.bit_length() - 1
        ncolb = 256 if epi == 'q' else 128
        k(f'''
        v_lshrrev_b32 v4, {lsh}, v0
        v_and_b32 v5, {LPR-1}, v0
        s_mul_i32 s46, s{wreg}, {BM//8}
        v_add_u32 v4, s46, v4
        v_mul_u32_u24 v6, {OST}, v4
        v_lshl_add_u32 v6, v5, 4, v6
        v_add_u32 v6, {OBASE}, v6
        v_add_u32 v4, s32, v4
        s_mov_b32 s46, {ldo}
        v_mul_lo_u32 v4, v4, s46
        s_mul_i32 s46, s33, {ncolb}
        v_lshl_add_u32 v5, v5, 4, s46
        v_add_u32 v4, v4, v5
        ''')
        for i in range(nins):
            k(f'ds_read_b128 v[{8+4*i}:{11+4*i}], v6 offset:{i*RPI*OST}')
        for i in range(nins):
            k(f's_waitcnt lgkmcnt({nins-1-i})')
            k(f's_mov_b32 s46, {i*RPI*ldo}')
            k(f'buffer_store_dwordx4 v[{8+4*i}:{11+4*i}], v4, s[20:23], s46 offen')
    k('s_waitcnt lgkmcnt(0)\ns_barrier')
    coop_store(34)
    if 'stamp' in GX:
        k(f'''
        s_waitcnt vmcnt(0)
        s_memtime s[66:67]
        s_waitcnt lgkmcnt(0)
        s_sub_u32 s62, s62, s60
        s_sub_u32 s64, s64, s60
        s_sub_u32 s66, s66, s60
        s_mov_b32 s58, 256
        s_mov_b32 s59, 0x00020000
        v_mov_b32 v4, s62
        v_mov_b32 v5, s64
        v_mov_b32 v6, s66
        v_mov_b32 v7, 0
        s_lshl_b32 s64, s34, 4
        v_mov_b32 v1, s64
        s_cmp_lg_u32 s2, 100
        s_cbranch_scc1 {L('end')}
        v_cmp_eq_u32 vcc, 0, v0
        s_and_saveexec_b64 s[68:69], vcc
        buffer_store_dwordx4 v[4:7], v1, s[56:59], 0 offen
        ''')
    k('s_endpgm')
    nv_compute = T0 + 10
    k(f'{L("loader")}:')
    k(f'''
    s_sub_u32 s34, s34, 4
    s_and_b32 s36, s34, 1
    s_lshr_b32 s37, s34, 1
    v_lshrrev_b32 v1, 3, v0
    v_and_b32 v2, 7, v0
    v_lshrrev_b32 v3, 4, v0
    ''')
    if U == 1:
        k('s_lshl_b32 s46, s34, 6')
        k('s_mov_b32 s47, 0')
    else:
        k('s_lshl_b32 s46, s36, 6')
        k('s_lshl_b32 s47, s37, 7')
    k(f'''
    s_add_u32 s46, s46, s32
    s_mov_b32 s48, {lda}
    ''')
    for a in range(8):
        k(f'''
        v_add_u32 v4, {(4*a)&7}, v3
        v_and_b32 v4, 7, v4
        v_xor_b32 v4, v2, v4
        v_lshlrev_b32 v4, 4, v4
        v_add_u32 v5, s46, v1
        v_add_u32 v5, {8*a}, v5
        v_mul_lo_u32 v5, v5, s48
        v_add3_u32 v{8+a}, v5, v4, s47
        ''')
    if U == 1:
        k(f'''
        s_cmp_eq_u32 s37, 0
        s_cselect_b32 s12, s12, s16
        s_cselect_b32 s13, s13, s17
        s_lshl_b32 s46, s36, 5
        ''')
        if epi == 'q':
            k(f'''
            s_mul_i32 s47, s33, 256
            s_lshl_b32 s49, s37, 7
            s_add_u32 s47, s47, s49
            ''')
        else:
            k('s_mul_i32 s47, s33, 128')
    else:
        k(f'''
        s_lshl_b32 s46, s36, 5
        s_lshl_b32 s49, s37, 6
        s_add_u32 s46, s46, s49
        s_mul_i32 s47, s33, 128
        ''')
    k(f's_mov_b32 s48, {ldb}')
    for b in range(4):
        k(f'''
        v_and_b32 v4, 1, v3
        v_or_b32 v4, {(b&1)<<1}, v4
        v_lshrrev_b32 v5, 1, v2
        v_xor_b32 v4, v5, v4
        v_lshlrev_b32 v4, 5, v4
        v_and_b32 v5, 1, v2
        v_lshl_add_u32 v4, v5, 4, v4
        v_add_u32 v5, s46, v1
        v_add_u32 v5, {8*b}, v5
        v_mul_lo_u32 v5, v5, s48
        v_add3_u32 v{16+b}, v5, v4, s47
        ''')
    k(f'''
    s_lshl_b32 s50, s34, 13
    s_lshl_b32 s51, s34, 12
    s_add_u32 s51, s51, 32768
    s_mov_b32 s52, 0
    s_mov_b32 s53, 0
    s_mov_b32 s39, 0
    ''')
    def issue():
        for a in range(8):
            k(f'''
            s_add_u32 s54, s39, s50
            s_add_u32 m0, s54, {a*1024}
            s_nop 0
            buffer_load_dwordx4 v{8+a}, s[8:11], s52 offen lds
            ''')
        for b in range(4):
            k(f'''
            s_add_u32 s54, s39, s51
            s_add_u32 m0, s54, {b*1024}
            s_nop 0
            buffer_load_dwordx4 v{16+b}, s[12:15], s53 offen lds
            ''')
        k(f'''
        s_add_u32 s52, s52, {128*U}
        s_add_u32 s53, s53, {64*U*ldb}
        s_add_u32 s39, s39, {STG}
        s_cmp_ge_u32 s39, {3*STG}
        s_cselect_b32 s39, 0, s39
        ''')
    issue(); issue(); issue()
    k(f'''
    s_waitcnt vmcnt(24)
    s_barrier
    s_mov_b32 s35, 0
    {L("lloop")}:
    s_waitcnt vmcnt(12)
    s_barrier
    ''')
    issue()
    k(f'''
    s_add_u32 s35, s35, 1
    s_cmp_lt_u32 s35, {NS-3}
    s_cbranch_scc1 {L("lloop")}
    s_waitcnt vmcnt(12)
    s_barrier
    s_waitcnt vmcnt(0)
    s_barrier
    ''')
    if cfg.get('pfkv'):
        k(f'''
        s_load_dwordx4 s[56:59], s[0:1], {KA['k']}
        s_and_b32 s46, s34, 1
        s_lshl_b32 s46, s46, 12
        s_lshl_b32 s47, s2, 13
        s_add_u32 s46, s46, s47
        v_lshlrev_b32 v4, 6, v0
        v_add_u32 v4, s46, v4
        s_waitcnt lgkmcnt(0)
        s_cmp_ge_u32 s34, 2
        s_cselect_b32 s60, s58, s56
        s_cselect_b32 s61, s59, s57
        s_mov_b32 s62, 0x200000
        s_mov_b32 s63, 0x00020000
        buffer_load_dword v5, v4, s[60:63], 0 offen
        ''')
    k(f'''
    s_add_u32 s34, s34, 4
    s_barrier
    ''')
    coop_store(34)
    k(f'''
    {L("end")}:
    s_endpgm
    ''')
    return k, dict(vgpr=max(nv_compute, 48), sgpr=72, grid=nwg, block=512, lds=3 * STG)

def build(kernels, path):
    hdr = open('adaLN_cond__gqa_block_cached__swiglu_ffn__prompt.s.ref').read().split('; Override launch')[0]
    out = [hdr.rstrip('\n')]
    for k, m in kernels:
        out.append(f'; @launch kernel={k.name} grid=({m["grid"]},1,1) block=({m["block"]},1,1) lds={m["lds"]}')
    out.append('.amdgcn_target "amdgcn-amd-amdhsa--gfx950"')
    out.append('.text')
    seen = set()
    for k, m in kernels:
        if k.name in seen: continue
        seen.add(k.name)
        k.pad()
        out.append(f'.globl {k.name}\n.p2align 8\n.type {k.name},@function\n{k.name}:')
        out.append(k.text())
    out.append('.section .rodata,"a"')
    seen = set()
    for k, m in kernels:
        if k.name in seen: continue
        seen.add(k.name)
        v = (m['vgpr'] + 7) // 8 * 8
        out.append(f'''.p2align 6
.amdhsa_kernel {k.name}
  .amdhsa_next_free_vgpr {v}
  .amdhsa_next_free_sgpr {m['sgpr']}
  .amdhsa_accum_offset {(v+3)//4*4}
  .amdhsa_group_segment_fixed_size 0
  .amdhsa_kernarg_size 112
  .amdhsa_user_sgpr_count 2
  .amdhsa_user_sgpr_kernarg_segment_ptr 1
  .amdhsa_system_sgpr_workgroup_id_x 1
.end_amdhsa_kernel''')
    open(path, 'w').write('\n'.join(out) + '\n')

if __name__ == '__main__':
    from attn3 import gen_attn
    ks = []
    ks.append(gen_mod())
    ks.append(gen_ln('ln1_kernel', False, 0, 0, 1, WS_H1))
    ks.append(gen_attn())
    from gemmw import gen_gemmw
    ks.append(gen_gemmw('wo_kernel', dict(K=4096, lda=8192, Aoff=WS_O, B=KA['wo'], Ooff=WS_X2, gidx=2, out_is_out=False, res_from_ws=False)))
    ks.append(gen_ln('ln2_kernel', True, WS_X2, 3, 4, WS_H2))
    from gu2 import gen_gu2
    ks.append(gen_gu2())
    ks.append(gen_gemmw('down_kernel', dict(K=3584, lda=7168, Aoff=WS_GU, B=KA['wd'], gidx=5, out_is_out=True, res_from_ws=True, Roff=WS_X2)))
    import os
    build(ks, os.environ.get('OUT', 'adaLN_cond__gqa_block_cached__swiglu_ffn__prompt.s'))
```

```python
from asmlib import Kernel
from gen import *
import os
XF = os.environ.get('XF', '')

def gen_attn():
    name = 'attn_kernel'
    k = Kernel(name)
    L = lambda s: f'L_{name}_{s}'
    NT = 32
    KSL = 16384
    KB = 96 * 1024; VB = 32 * 1024
    def ksl(j): return ((j + 3) % 4) * KSL
    def vsl(j): return ((j + 1) % 4) * KSL
    STG = 49152
    Q = 4
    S = 36
    O = 68
    P = 132
    KF = 148
    VF = 164
    AK = 180
    AV = 188
    DM = 196
    M = 200; LS = 201; AL = 202; MN = 203; T = 204
    SUM = 212
    CL = 216; CS = 217
    CT = 218
    PFA = 219; PFD = 220; QA = 221
    PE = 224
    NV = 256
    k(f'''
    s_cmp_ge_u32 s2, 256
    s_cbranch_scc1 {L('end')}
    s_load_dwordx2 s[4:5], s[0:1], {KA['ws']}
    s_load_dwordx2 s[6:7], s[0:1], {KA['k']}
    s_load_dwordx2 s[40:41], s[0:1], {KA['v']}
    s_load_dwordx2 s[24:25], s[0:1], {KA['wo']}
    s_load_dwordx4 s[28:31], s[0:1], {KA['wg']}
    s_load_dwordx2 s[26:27], s[0:1], {KA['wd']}
    s_load_dwordx2 s[88:89], s[0:1], {KA['wq']}
    v_lshrrev_b32 v{T}, 6, v0
    v_and_b32 v0, 63, v0
    s_nop 0
    v_readfirstlane_b32 s34, v{T}
    s_and_b32 s3, s2, 7
    s_lshr_b32 s35, s2, 3
    s_lshr_b32 s32, s3, 1
    s_lshl_b32 s33, s3, 2
    s_and_b32 s36, s35, 3
    s_add_u32 s33, s33, s36
    s_lshr_b32 s36, s35, 2
    s_lshr_b32 s49, s34, 2
    s_waitcnt lgkmcnt(0)
    ''')
    if 'stamp' in XF:
        k('''
        s_memtime s[60:61]
        s_memrealtime s[62:63]
        s_load_dwordx2 s[56:57], s[0:1], 96
        s_waitcnt lgkmcnt(0)
        s_mov_b32 s72, s60
        s_mov_b32 s70, 0
        s_mov_b32 s71, 0
        s_mov_b32 s77, 0
        ''')
    srd(k, 8, 4, 5, 2048 * 2048, WS_H1)
    srd(k, 84, 88, 89, 1024 * 8192)
    srd(k, 20, 4, 5, 2048 * 8192, WS_O)
    k(f'''
    s_lshr_b32 s37, s34, 1
    s_cmp_eq_u32 s37, 1
    s_cselect_b32 s24, s28, s24
    s_cselect_b32 s25, s29, s25
    s_cmp_eq_u32 s37, 2
    s_cselect_b32 s24, s30, s24
    s_cselect_b32 s25, s31, s25
    s_cmp_eq_u32 s37, 3
    s_cselect_b32 s24, s26, s24
    s_cselect_b32 s25, s27, s25
    s_cmp_eq_u32 s37, 0
    s_cselect_b32 s38, 0x800000, 0
    s_cmp_lg_u32 s37, 0
    s_cselect_b32 s18, 0x700000, s38
    s_mov_b32 s16, s24
    s_mov_b32 s17, s25
    s_mov_b32 s19, 0x00020000
    s_lshr_b32 s38, s18, 8
    s_mul_i32 s38, s38, s2
    s_and_b32 s37, s34, 1
    s_lshl_b32 s37, s37, 14
    s_add_u32 s38, s38, s37
    v_lshlrev_b32 v{PFA}, 6, v0
    v_add_u32 v{PFA}, s38, v{PFA}
    ''')
    k(f'''
    s_cmp_eq_u32 s49, 0
    s_cselect_b32 s6, s40, s6
    s_cselect_b32 s7, s41, s7
    s_lshl_b32 s37, s32, 19
    s_add_u32 s12, s6, s37
    s_addc_u32 s13, s7, 0
    s_mov_b32 s14, 0x80000
    s_mov_b32 s15, 0x00020000
    ''')
    k(f'''
    v_and_b32 v{T}, 31, v0
    v_lshrrev_b32 v{T+1}, 5, v0
    s_lshl_b32 s37, s36, 8
    s_lshl_b32 s38, s34, 5
    s_add_u32 s37, s37, s38
    v_add_u32 v{T+2}, s37, v{T}
    v_lshlrev_b32 v{T+2}, 13, v{T+2}
    s_lshl_b32 s38, s33, 8
    v_lshl_add_u32 v{T+3}, v{T+1}, 4, s38
    v_add_u32 v{T+2}, v{T+2}, v{T+3}
    ''')
    k(f'v_mov_b32 v{QA}, v{T+2}')
    k(f'''
    v_lshrrev_b32 v{T+3}, 4, v0
    v_and_b32 v{T+4}, 15, v0
    s_and_b32 s37, s34, 3
    s_lshl_b32 s37, s37, 4
    s_cmp_eq_u32 s49, 0
    s_cselect_b64 s[50:51], -1, 0
    ''')
    for j in range(4):
        k(f'''
        v_add_u32 v{T+5}, s37, v{T+3}
        v_add_u32 v{T+5}, {4*j}, v{T+5}
        v_and_b32 v{T+6}, 15, v{T+5}
        v_lshlrev_b32 v{T+7}, 2, v{T+3}
        v_cndmask_b32 v{T+6}, v{T+6}, v{T+7}, s[50:51]
        v_xor_b32 v{T+6}, v{T+4}, v{T+6}
        v_lshlrev_b32 v{T+6}, 4, v{T+6}
        v_lshl_add_u32 v{DM+j}, v{T+5}, 8, v{T+6}
        ''')
    k(f'''
    v_and_b32 v{T+3}, 1, v{T}
    v_xor_b32 v{T+3}, v{T+1}, v{T+3}
    v_lshlrev_b32 v{T+3}, 4, v{T+3}
    v_lshl_add_u32 v{T+3}, v{T}, 8, v{T+3}
    v_bfe_u32 v{T+4}, v{T}, 1, 3
    v_add_u32 v{T+3}, {KB}, v{T+3}
    ''')
    for s in range(8):
        k(f'''
        v_xor_b32 v{T+5}, {s}, v{T+4}
        v_lshl_add_u32 v{AK+s}, v{T+5}, 5, v{T+3}
        ''')
    k(f'''
    v_and_b32 v{T+3}, 15, v0
    v_lshrrev_b32 v{T+4}, 2, v{T+3}
    v_lshl_add_u32 v{T+5}, v{T+1}, 2, v{T+4}
    v_lshlrev_b32 v{T+5}, 8, v{T+5}
    v_bfe_u32 v{T+6}, v0, 4, 1
    v_lshl_add_u32 v{T+5}, v{T+6}, 5, v{T+5}
    v_and_b32 v{T+6}, 3, v{T+3}
    v_lshl_add_u32 v{T+5}, v{T+6}, 3, v{T+5}
    v_add_u32 v{T+5}, {VB}, v{T+5}
    ''')
    for db in range(4):
        k(f'''
        v_xor_b32 v{T+6}, {db}, v{T+4}
        v_lshl_add_u32 v{AV+db}, v{T+6}, 6, v{T+5}
        ''')
    for i in range(64):
        k(f'v_mov_b32 v{O+i}, 0')
    k(f'''
    v_mov_b32 v{M}, 0xff800000
    v_mov_b32 v{MN}, 0xff800000
    v_mov_b32 v{LS}, 0
    v_mov_b32 v{CL}, 0x{LOG2E:x}
    v_mov_b32 v{CS}, 0x{SCALE:x}
    v_mov_b32 v{CT}, 0x4b800000
    s_and_b32 s46, s34, 3
    s_lshl_b32 s46, s46, 12
    s_mov_b32 s54, {KB}
    s_cmp_eq_u32 s49, 0
    s_cselect_b32 s37, {VB}, s54
    s_add_u32 s46, s46, s37
    s_mov_b32 s47, 0
    s_lshl_b32 s53, s49, 15
    ''')
    def dma(tile):
        k(f'''
        s_xor_b32 s52, s53, {vsl(tile)}
        s_add_u32 s52, s52, s46
        ''')
        for j in range(4):
            k(f'''
            s_add_u32 m0, s52, {j*1024}
            s_nop 0
            buffer_load_dwordx4 v{DM+j}, s[12:15], s47 offen lds
            ''')
        k('s_add_u32 s47, s47, 16384')
    def kread(slot, n):
        kb, s = n >> 3, n & 7
        r = KF + (n & 3) * 4
        return [f'ds_read_b128 v[{r}:{r+3}], v{AK+s} offset:{ksl(slot) + kb*8192}']
    def qk(n):
        kb, s = n >> 3, n & 7
        r = KF + (n & 3) * 4
        d = S + kb * 16
        c = '0' if s == 0 else f'v[{d}:{d+15}]'
        return f'v_mfma_f32_32x32x16_bf16 v[{d}:{d+15}], v[{r}:{r+3}], v[{Q+4*s}:{Q+4*s+3}], {c}'
    def vread(slot, n):
        db, j = n >> 2, n & 3
        r = VF + (n & 3) * 4
        return [f'ds_read_b64_tr_b16 v[{r}:{r+1}], v{AV+db} offset:{vsl(slot) + (16*j)*256}',
                f'ds_read_b64_tr_b16 v[{r+2}:{r+3}], v{AV+db} offset:{vsl(slot) + (16*j+8)*256}']
    def pv(n):
        db, j = n >> 2, n & 3
        r = VF + (n & 3) * 4
        d = O + db * 16
        return f'v_mfma_f32_32x32x16_bf16 v[{d}:{d+15}], v[{r}:{r+3}], v[{P+4*j}:{P+4*j+3}], v[{d}:{d+15}]'
    def valuR():
        o = []
        for b in range(0, 32, 8):
            for i in range(b, b + 8): o.append(f'v_cvt_pk_bf16_f32 v{S+i}, 0, v{S+i}')
            for i in range(b, b + 8): o.append(f'v_mul_f32 v{S+i}, v{CS}, v{S+i}')
            for i in range(b, b + 8): o.append(f'v_cvt_pk_bf16_f32 v{S+i}, 0, v{S+i}')
        return o
    def exps():
        o = []
        for b in range(0, 32, 8):
            for i in range(b, b + 8): o.append(f'v_fma_f32 v{PE+i}, v{S+i}, v{CL}, -v{MN}')
            for i in range(b, b + 8): o.append(f'v_exp_f32 v{PE+i}, v{PE+i}')
            if b >= 8:
                for i in range(b - 8, b):
                    c = i & 3
                    if i < 4: o.append(f'v_mov_b32 v{SUM+c}, v{PE+i}')
                    else: o.append(f'v_add_f32 v{SUM+c}, v{SUM+c}, v{PE+i}')
        for i in range(24, 32):
            o.append(f'v_add_f32 v{SUM+(i&3)}, v{SUM+(i&3)}, v{PE+i}')
        o.append(f'v_add_f32 v{SUM}, v{SUM}, v{SUM+1}')
        o.append(f'v_add_f32 v{SUM+2}, v{SUM+2}, v{SUM+3}')
        o.append(f'v_add_f32 v{SUM}, v{SUM}, v{SUM+2}')
        return o
    def valu():
        o = exps()
        valu.cnt += 1
        lab = L('nr%d' % valu.cnt)
        o.append(f'v_cmp_nge_f32 vcc, v{CT}, v{SUM}')
        o.append(f's_cbranch_vccz {lab}')
        for st in range(3):
            for c in range(4):
                b = S + 8 * c
                if st == 0: o.append(f'v_max3_f32 v{T+c}, v{b}, v{b+1}, v{b+2}')
                else: o.append(f'v_max3_f32 v{T+c}, v{T+c}, v{b+1+2*st}, v{b+2+2*st}')
        o.append(f'v_max3_f32 v{T}, v{T}, v{S+7}, v{S+15}')
        o.append(f'v_max3_f32 v{T+2}, v{T+2}, v{S+23}, v{S+31}')
        o.append(f'v_max3_f32 v{T}, v{T}, v{T+1}, v{T+2}')
        o.append(f'v_max3_f32 v{T}, v{T}, v{T+3}, v{M}')
        o.append(f'v_mov_b32 v{T+1}, v{T}')
        o.append(f'v_permlane32_swap_b32 v{T}, v{T+1}')
        o.append(f'v_max_f32 v{T}, v{T}, v{T+1}')
        o.append(f'v_mul_f32 v{MN}, v{CL}, v{T}')
        o.append(f'v_fma_f32 v{T+1}, v{M}, v{CL}, -v{MN}')
        o.append(f'v_exp_f32 v{AL}, v{T+1}')
        o.append(f'v_mov_b32 v{M}, v{T}')
        o.append(f'v_mul_f32 v{LS}, v{AL}, v{LS}')
        for i in range(64): o.append(f'v_mul_f32 v{O+i}, v{AL}, v{O+i}')
        o += exps()
        o.append(f'{lab}:')
        for i in range(0, 32, 2): o.append(f'v_cvt_pk_bf16_f32 v{P+(i>>1)}, v{PE+i}, v{PE+i+1}')
        o.append(f'v_add_f32 v{LS}, v{LS}, v{SUM}')
        return o
    valu.cnt = 0
    def valuR_old():
        o = []
        for b in range(0, 32, 8):
            for i in range(b, b + 8): o.append(f'v_cvt_pk_bf16_f32 v{S+i}, 0, v{S+i}')
            for i in range(b, b + 8): o.append(f'v_mul_f32 v{S+i}, v{CS}, v{S+i}')
            for i in range(b, b + 8): o.append(f'v_cvt_pk_bf16_f32 v{S+i}, 0, v{S+i}')
        for st in range(3):
            for c in range(4):
                b = S + 8 * c
                if st == 0: o.append(f'v_max3_f32 v{T+c}, v{b}, v{b+1}, v{b+2}')
                else: o.append(f'v_max3_f32 v{T+c}, v{T+c}, v{b+1+2*st}, v{b+2+2*st}')
        o.append(f'v_max3_f32 v{T}, v{T}, v{S+7}, v{S+15}')
        o.append(f'v_max3_f32 v{T+2}, v{T+2}, v{S+23}, v{S+31}')
        o.append(f'v_max3_f32 v{T}, v{T}, v{T+1}, v{T+2}')
        o.append(f'v_max_f32 v{T}, v{T}, v{T+3}')
        return o
    def valu_old():
        o = []
        o.append(f'v_mov_b32 v{T+1}, v{T}')
        o.append(f'v_permlane32_swap_b32 v{T}, v{T+1}')
        o.append(f'v_max_f32 v{T}, v{T}, v{T+1}')
        o.append(f'v_sub_f32 v{T+1}, v{T}, v{M}')
        o.append(f'v_cmp_lt_f32 vcc, v{CT}, v{T+1}')
        valu_old.cnt += 1
        lab = L('nr%d' % valu_old.cnt)
        o.append(f's_cbranch_vccz {lab}')
        o.append(f'v_max_f32 v{T}, v{T}, v{M}')
        o.append(f'v_mul_f32 v{MN}, v{CL}, v{T}')
        o.append(f'v_fma_f32 v{T+1}, v{M}, v{CL}, -v{MN}')
        o.append(f'v_exp_f32 v{AL}, v{T+1}')
        o.append(f'v_mov_b32 v{M}, v{T}')
        o.append(f'v_mul_f32 v{LS}, v{AL}, v{LS}')
        for i in range(64): o.append(f'v_mul_f32 v{O+i}, v{AL}, v{O+i}')
        o.append(f'{lab}:')
        for b in range(0, 32, 8):
            for i in range(b, b + 8): o.append(f'v_fma_f32 v{S+i}, v{S+i}, v{CL}, -v{MN}')
            for i in range(b, b + 8): o.append(f'v_exp_f32 v{S+i}, v{S+i}')
            if b >= 8:
                for i in range(b - 8, b):
                    c = i & 3
                    if i < 4: o.append(f'v_mov_b32 v{SUM+c}, v{S+i}')
                    else: o.append(f'v_add_f32 v{SUM+c}, v{SUM+c}, v{S+i}')
                for i in range(b - 8, b, 2): o.append(f'v_cvt_pk_bf16_f32 v{P+(i>>1)}, v{S+i}, v{S+i+1}')
        for i in range(24, 32):
            o.append(f'v_add_f32 v{SUM+(i&3)}, v{SUM+(i&3)}, v{S+i}')
        for i in range(24, 32, 2): o.append(f'v_cvt_pk_bf16_f32 v{P+(i>>1)}, v{S+i}, v{S+i+1}')
        o.append(f'v_add_f32 v{SUM}, v{SUM}, v{SUM+1}')
        o.append(f'v_add_f32 v{SUM+2}, v{SUM+2}, v{SUM+3}')
        o.append(f'v_add_f32 v{SUM}, v{SUM}, v{SUM+2}')
        o.append(f'v_add_f32 v{LS}, v{LS}, v{SUM}')
        return o
    valu_old.cnt = 0
    if 'newmax' not in XF:
        NV = 224
        valuR = valuR_old; valu = valu_old
        k(f'v_mov_b32 v{CT}, 0x41800000')
    def rescale(db):
        return []
        return [f'v_mul_f32 v{O+db*16+i}, v{AL}, v{O+db*16+i}' for i in range(16)]

    PF = 4
    def mlist(kidx):
        seq = []
        if kidx < NT:
            for n in range(16): seq.append((qk(n), kread(kidx % 4, n), ('qk', n)))
        if kidx >= 1:
            for n in range(16): seq.append((pv(n), vread((kidx - 1) % 4, n), ('pv', n)))
        return seq
    def prefetch(kidx):
        for (m, rd, tag) in mlist(kidx)[:PF]:
            for x in rd: k(x)
    def tick(acc):
        if 'phase' not in XF: return
        k(f'''
        s_memtime s[74:75]
        s_waitcnt lgkmcnt(0)
        s_sub_u32 s76, s74, s72
        s_add_u32 s{acc}, s{acc}, s76
        s_mov_b32 s72, s74
        ''')
    def mphase(kidx, prefetched):
        tick(77)
        if 'noprio' not in XF: k('s_setprio 3')
        _mphase(kidx, prefetched)
        if 'noprio' not in XF: k('s_setprio 0')
        tick(70)
    def _mphase(kidx, prefetched):
        seq = mlist(kidx)
        if not prefetched: prefetch(kidx)
        n = len(seq)
        vr = valuR()
        cut = len(vr)
        if 'cut75' in XF: cut = 72
        if 'cut50' in XF: cut = 48
        if kidx < NT: mphase.rest = vr[cut:]
        vr = vr[:cut]
        for i, (m, rd, tag) in enumerate(seq):
            if tag[0] == 'pv' and tag[1] == 0:
                if 'pvlow' in XF: k('s_setprio 0')
                for x in rescale(0): k(x)
            cnt = sum(len(seq[j][1]) for j in range(i + 1, min(i + PF, n)))
            k(f's_waitcnt lgkmcnt({cnt})')
            k(m)
            if i + PF < n:
                for x in seq[i + PF][1]: k(x)
            if 1 <= kidx < NT and i in (1, 5, 9, 13):
                j = (i - 1) // 4
                if j == 0:
                    k(f'''
                    s_add_u32 s52, s46, {vsl(kidx + 1)}
                    ''')
                k(f'''
                s_add_u32 m0, s52, {j*1024}
                s_nop 0
                buffer_load_dwordx4 v{DM+j}, s[12:15], s47 offen lds
                ''')
                if j == 3:
                    k('s_add_u32 s47, s47, 16384')
                    if kidx <= 4:
                        k(f'''
                        s_cmp_lg_u32 s35, 0
                        s_cbranch_scc1 {L('pf%d' % kidx)}
                        buffer_load_dword v{PFD}, v{PFA}, s[16:19], 0 offen offset:0
                        v_add_u32 v{PFA}, 4096, v{PFA}
                        {L('pf%d' % kidx)}:
                        ''')
            if tag[0] == 'pv' and kidx < NT:
                lo = tag[1] * len(vr) // 16; hi = (tag[1] + 1) * len(vr) // 16
                for x in vr[lo:hi]: k(x)
        if kidx == 0:
            for x in vr: k(x)
    def vphase(kidx):
        dma_slot = None
        va = valu()
        tick(77)
        for x in mphase.rest: k(x)
        for x in va: k(x)
        prefetch(kidx + 1)
        tick(71)
        k('s_waitcnt vmcnt(%d)' % (0 if kidx == NT - 1 else 4))
        k('s_barrier')
    vphase.cnt = 0

    GA = KF; GAb = KF + 4; GB = VF; GBb = VF + 2; GD = VF + 4
    def XFr(st): return P + 4 * st
    def WFr(st, b): return S + 16 * st + 4 * b
    k(f'''
    v_and_b32 v{T}, 31, v0
    v_lshrrev_b32 v{T+1}, 5, v0
    v_bfe_u32 v{T+2}, v{T}, 1, 3
    v_xor_b32 v{T+2}, v{T+1}, v{T+2}
    v_lshlrev_b32 v{T+2}, 4, v{T+2}
    v_lshl_add_u32 v{T+2}, v{T}, 7, v{T+2}
    s_lshl_b32 s37, s34, 12
    v_add_u32 v{GAb}, s37, v{T+2}
    v_xor_b32 v{GAb+1}, 32, v{GAb}
    v_xor_b32 v{GAb+2}, 64, v{GAb}
    v_xor_b32 v{GAb+3}, 96, v{GAb}
    v_and_b32 v{T+2}, 15, v0
    v_lshrrev_b32 v{T+3}, 2, v{T+2}
    v_lshl_add_u32 v{T+4}, v{T+1}, 3, v{T+3}
    v_lshlrev_b32 v{T+4}, 7, v{T+4}
    v_bfe_u32 v{T+5}, v0, 4, 1
    v_and_b32 v{T+6}, 2, v{T+3}
    v_xor_b32 v{T+5}, v{T+5}, v{T+6}
    v_lshl_add_u32 v{T+4}, v{T+5}, 5, v{T+4}
    v_and_b32 v{T+5}, 1, v{T+2}
    v_lshl_add_u32 v{T+4}, v{T+5}, 4, v{T+4}
    v_bfe_u32 v{T+5}, v{T+2}, 1, 1
    v_lshl_add_u32 v{T+4}, v{T+5}, 3, v{T+4}
    v_add_u32 v{GBb}, 32768, v{T+4}
    v_xor_b32 v{GBb+1}, 64, v{GBb}
    v_lshrrev_b32 v{T+2}, 3, v0
    v_and_b32 v{T+3}, 7, v0
    v_lshrrev_b32 v{T+4}, 4, v0
    s_lshl_b32 s37, s36, 8
    s_lshl_b32 s38, s34, 5
    s_add_u32 s37, s37, s38
    ''')
    for a in range(4):
        k(f'''
        v_add_u32 v{T+5}, {(4*a)&7}, v{T+4}
        v_and_b32 v{T+5}, 7, v{T+5}
        v_xor_b32 v{T+5}, v{T+3}, v{T+5}
        v_lshlrev_b32 v{T+5}, 4, v{T+5}
        v_add_u32 v{T+6}, s37, v{T+2}
        v_add_u32 v{T+6}, {8*a}, v{T+6}
        v_lshl_add_u32 v{GD+a}, v{T+6}, 11, v{T+5}
        ''')
    k(f'''
    s_and_b32 s37, s34, 3
    s_lshl_b32 s37, s37, 4
    s_lshl_b32 s38, s33, 8
    s_lshl_b32 s39, s49, 7
    s_add_u32 s38, s38, s39
    v_and_b32 v{T+5}, 1, v{T+4}
    v_lshlrev_b32 v{T+5}, 1, v{T+5}
    v_lshrrev_b32 v{T+6}, 1, v{T+3}
    v_xor_b32 v{T+5}, v{T+6}, v{T+5}
    v_lshlrev_b32 v{T+5}, 5, v{T+5}
    v_and_b32 v{T+6}, 1, v{T+3}
    v_lshl_add_u32 v{T+5}, v{T+6}, 4, v{T+5}
    v_add_u32 v{T+5}, s38, v{T+5}
    ''')
    for b in range(2):
        k(f'''
        v_add_u32 v{T+6}, s37, v{T+2}
        v_add_u32 v{T+6}, {8*b}, v{T+6}
        v_lshl_add_u32 v{GD+4+b}, v{T+6}, 13, v{T+5}
        ''')
    k(f'''
    s_lshl_b32 s90, s34, 12
    s_lshl_b32 s91, s34, 11
    s_add_u32 s91, s91, 32768
    ''')
    def gdma(st):
        sl = (st % 3) * STG
        k(f's_mov_b32 s92, {st*128}')
        k(f's_mov_b32 s93, {st*64*8192}')
        for a in range(4):
            k(f'''
            s_add_u32 m0, s90, {sl + a*1024}
            s_nop 0
            buffer_load_dwordx4 v{GD+a}, s[8:11], s92 offen lds
            ''')
        for b in range(2):
            k(f'''
            s_add_u32 m0, s91, {sl + b*1024}
            s_nop 0
            buffer_load_dwordx4 v{GD+4+b}, s[84:87], s93 offen lds
            ''')
    def gaddr(st):
        sl = (st % 3) * STG
        for i in range(4): k(f'v_add_u32 v{GA+i}, {sl}, v{GAb+i}')
        for i in range(2): k(f'v_add_u32 v{GB+i}, {sl}, v{GBb+i}')
    def greads(ks, st):
        o = [f'ds_read_b128 v[{XFr(st)}:{XFr(st)+3}], v{GA+ks}']
        for b in range(4):
            for x in range(2):
                r = WFr(st, b) + 2 * x
                o.append(f'ds_read_b64_tr_b16 v[{r}:{r+1}], v{GB+(b&1)} offset:{(b>>1)*8192 + (16*ks+4*x)*128}')
        return o
    def gmf(st, first):
        o = []
        for b in range(4):
            d = O + 16 * b
            c = '0' if first else f'v[{d}:{d+15}]'
            o.append(f'v_mfma_f32_32x32x16_bf16 v[{d}:{d+15}], v[{WFr(st,b)}:{WFr(st,b)+3}], v[{XFr(st)}:{XFr(st)+3}], {c}')
        return o
    k(f'''
    s_cmp_eq_u32 s49, 0
    s_cbranch_scc1 {L("gp0")}
    ''')
    dma(0)
    k(f'{L("gp0")}:')
    gdma(0); gdma(1); gdma(2)
    k('s_waitcnt vmcnt(12)')
    k('s_barrier')
    gaddr(0)
    for x in greads(0, 0): k(x)
    NG = 16
    for st in range(NG):
        for ks in range(4):
            k('s_waitcnt lgkmcnt(0)')
            rd = []
            if ks < 3:
                rd = greads(ks + 1, (ks + 1) & 1)
            elif st < NG - 1:
                k(f's_waitcnt vmcnt({6 if st + 2 < NG else 0})')
                k('s_barrier')
                gaddr(st + 1)
                rd = greads(0, 0)
            mf = gmf(ks & 1, st == 0 and ks == 0)
            for i, m in enumerate(mf):
                k(m)
                for x in rd[i * 3:(i + 1) * 3 if i < 3 else None]: k(x)
            if ks == 3 and st + 3 < NG: gdma(st + 3)
            if ks == 3 and st == NG - 2:
                k(f'''
                s_cmp_eq_u32 s49, 0
                s_cbranch_scc1 {L("gp1")}
                ''')
                dma(1); dma(2); dma(3)
                k(f'''
                s_branch {L("gp2")}
                {L("gp1")}:
                ''')
                dma(0); dma(1)
                k(f'{L("gp2")}:')
    for b in range(4):
        for jj in range(2):
            for e in range(4):
                a = O + 16 * b + 8 * jj + 2 * e
                k(f'v_cvt_pk_bf16_f32 v{Q + 4*(2*b+jj) + e}, v{a}, v{a+1}')
    for i in range(64):
        k(f'v_mov_b32 v{O+i}, 0')
    k(f'''
    s_cmp_eq_u32 s49, 0
    s_cbranch_scc1 {L("go")}
    s_waitcnt vmcnt(8)
    s_barrier
    {L("go")}:
    ''')
    if 'marks' in XF:
        k('s_memtime s[80:81]\ns_waitcnt lgkmcnt(0)')
    mphase(0, False)
    k('s_barrier')
    vphase(0)
    k('s_mov_b32 s35, 0')
    k(f'{L("loop")}:')
    for kk in range(1, 5):
        mphase(kk, True)
        k('s_barrier')
        vphase(kk)
    k(f'''
    s_add_u32 s35, s35, 1
    s_cmp_lt_u32 s35, 7
    s_cbranch_scc1 {L("loop")}
    ''')
    for kk in range(29, 32):
        mphase(kk, True)
        k('s_barrier')
        vphase(kk)
    mphase(32, True)
    if 'marks' in XF:
        k('s_memtime s[82:83]\ns_waitcnt lgkmcnt(0)')
    k(f'''
    s_cmp_lg_u32 s49, 0
    s_cbranch_scc1 {L("fin")}
    s_waitcnt vmcnt(0)
    s_barrier
    {L("fin")}:
    v_mov_b32 v{T+1}, v{LS}
    v_permlane32_swap_b32 v{LS}, v{T+1}
    v_add_f32 v{LS}, v{LS}, v{T+1}
    v_rcp_f32 v{T+2}, v{LS}
    v_and_b32 v{T}, 31, v0
    v_lshrrev_b32 v{T+1}, 5, v0
    s_lshl_b32 s37, s36, 8
    s_lshl_b32 s38, s34, 5
    s_add_u32 s37, s37, s38
    v_add_u32 v{T+3}, s37, v{T}
    v_lshlrev_b32 v{T+3}, 13, v{T+3}
    s_lshl_b32 s38, s33, 8
    v_lshl_add_u32 v{T+4}, v{T+1}, 3, s38
    v_add_u32 v{T+3}, v{T+3}, v{T+4}
    v_fma_f32 v{T+4}, -v{T+2}, v{LS}, 1.0
    v_fma_f32 v{T+2}, v{T+4}, v{T+2}, v{T+2}
    ''')
    k(f'''
    s_mul_i32 s38, s34, 8704
    s_add_u32 s38, s38, {90*1024}
    v_mul_u32_u24 v{T+5}, 272, v{T}
    v_lshl_add_u32 v{T+5}, v{T+1}, 3, v{T+5}
    v_add_u32 v{T+5}, s38, v{T+5}
    v_lshrrev_b32 v{T+6}, 4, v0
    v_and_b32 v{T+7}, 15, v0
    v_add_u32 v{T+3}, s37, v{T+6}
    v_lshlrev_b32 v{T+3}, 13, v{T+3}
    s_lshl_b32 s39, s33, 8
    v_lshl_add_u32 v{T+4}, v{T+7}, 4, s39
    v_add_u32 v{T+3}, v{T+3}, v{T+4}
    v_mul_u32_u24 v{T+6}, 272, v{T+6}
    v_lshl_add_u32 v{T+6}, v{T+7}, 4, v{T+6}
    v_add_u32 v{T+6}, s38, v{T+6}
    ''')
    for db in range(4):
        for g in range(4):
            r = O + db * 16 + g * 4
            for e in range(4):
                k(f'v_mul_f32 v{r+e}, v{T+2}, v{r+e}')
            k(f'''
            v_cvt_pk_bf16_f32 v{r}, v{r}, v{r+1}
            v_cvt_pk_bf16_f32 v{r+1}, v{r+2}, v{r+3}
            ds_write_b64 v{T+5}, v[{r}:{r+1}] offset:{db*64+g*16}
            ''')
    k('s_waitcnt lgkmcnt(0)')
    for i in range(8):
        k(f'ds_read_b128 v[{O+4*i}:{O+4*i+3}], v{T+6} offset:{i*4*272}')
    for i in range(8):
        k(f's_waitcnt lgkmcnt({7-i})')
        k(f's_mov_b32 s39, {i*4*8192}')
        k(f'buffer_store_dwordx4 v[{O+4*i}:{O+4*i+3}], v{T+3}, s[20:23], s39 offen')
    if 'stamp' in XF:
        k(f'''
        s_memtime s[64:65]
        s_memrealtime s[66:67]
        s_waitcnt lgkmcnt(0)
        s_sub_u32 s64, s64, s60
        s_sub_u32 s66, s66, s62
        s_mov_b32 s58, 256
        s_mov_b32 s59, 0x00020000
        v_mov_b32 v2, s64
        v_mov_b32 v3, s66
        ''')
        if 'marks' in XF:
            k('''
            s_sub_u32 s80, s80, s60
            s_sub_u32 s82, s82, s60
            s_lshl_b32 s80, s80, 0
            v_mov_b32 v3, s82
            ''')
            k('v_mov_b32 v2, s80') if 'marks1' in XF else None
        if 'phase' in XF:
            k('''
            v_mov_b32 v2, s70
            v_mov_b32 v3, s71
            ''')
        k(f'''
        s_lshl_b32 s64, s34, 3
        v_mov_b32 v1, s64
        s_cmp_lg_u32 s2, 100
        s_cbranch_scc1 {L('end')}
        v_cmp_eq_u32 vcc, 0, v0
        s_and_saveexec_b64 s[68:69], vcc
        buffer_store_dwordx2 v[2:3], v1, s[56:59], 0 offen
        ''')
    k(f'''
    {L('end')}:
    s_endpgm
    ''')
    return k, dict(vgpr=NV, sgpr=96, grid=256, block=512, lds=160 * 1024)
```

```python
from asmlib import Kernel
from gen import *

WS_PART = 0x4000000

def gen_gemms(name, cfg):
    K = cfg['K']; lda = cfg['lda']; ldb = 2048
    KH = K // 2
    NS = KH // 64; NSL = 4; ST = 32768
    MB = 4; NB = 4
    k = Kernel(name)
    L = lambda s: f'L_{name}_{s}'
    k(f'''
    s_cmp_ge_u32 s2, 256
    s_cbranch_scc1 {L('end')}
    s_load_dwordx2 s[4:5], s[0:1], {KA['ws']}
    s_load_dwordx2 s[6:7], s[0:1], {cfg['B']}
    v_lshrrev_b32 v1, 6, v0
    v_and_b32 v0, 63, v0
    s_nop 0
    v_readfirstlane_b32 s34, v1
    s_and_b32 s3, s2, 7
    s_lshr_b32 s35, s2, 3
    s_and_b32 s32, s3, 3
    s_lshl_b32 s32, s32, 2
    s_and_b32 s36, s35, 3
    s_add_u32 s32, s32, s36
    s_lshr_b32 s33, s3, 2
    s_lshl_b32 s33, s33, 2
    s_bfe_u32 s36, s35, 0x20002
    s_add_u32 s33, s33, s36
    s_lshr_b32 s45, s35, 4
    s_lshl_b32 s32, s32, 7
    s_waitcnt lgkmcnt(0)
    ''')
    srd(k, 8, 4, 5, 2048 * lda, cfg['Aoff'])
    srd(k, 12, 6, 7, K * ldb)
    srd(k, 20, 4, 5, 2 * 2048 * 4096, WS_PART)
    k(f'''
    s_cmp_ge_u32 s34, 4
    s_cbranch_scc1 {L('loader')}
    ''')
    ACC = 4
    F0 = ACC + 64; FS = 32
    def fA(st, mb): return F0 + st * FS + mb * 4
    def fB(st, nb): return F0 + st * FS + 16 + nb * 4
    AD = F0 + 2 * FS
    vA = [AD, AD + 1]; vB = [AD + 2, AD + 3]; vAb = [AD + 4, AD + 5]; vBb = [AD + 6, AD + 7]
    T0 = AD + 8
    k(f'''
    s_and_b32 s36, s34, 1
    s_lshr_b32 s37, s34, 1
    v_and_b32 v{T0}, 15, v0
    v_lshrrev_b32 v{T0+1}, 4, v0
    v_lshrrev_b32 v{T0+2}, 1, v{T0}
    v_xor_b32 v{T0+2}, v{T0+1}, v{T0+2}
    v_lshlrev_b32 v{T0+2}, 4, v{T0+2}
    v_lshl_add_u32 v{T0+2}, v{T0}, 7, v{T0+2}
    s_lshl_b32 s38, s36, 13
    v_add_u32 v{vAb[0]}, s38, v{T0+2}
    v_xor_b32 v{vAb[1]}, 64, v{vAb[0]}
    v_lshrrev_b32 v{T0+2}, 3, v{T0}
    v_and_b32 v{T0+3}, 1, v{T0+1}
    v_lshl_or_b32 v{T0+2}, v{T0+3}, 1, v{T0+2}
    v_lshlrev_b32 v{T0+2}, 5, v{T0+2}
    v_and_b32 v{T0+3}, 3, v{T0}
    v_lshl_add_u32 v{T0+2}, v{T0+3}, 3, v{T0+2}
    v_lshrrev_b32 v{T0+3}, 2, v{T0}
    v_lshl_add_u32 v{T0+3}, v{T0+1}, 3, v{T0+3}
    v_lshl_add_u32 v{vBb[0]}, v{T0+3}, 7, v{T0+2}
    s_lshl_b32 s38, s37, 13
    s_add_u32 s38, s38, 16384
    v_add_u32 v{vBb[0]}, s38, v{vBb[0]}
    v_xor_b32 v{vBb[1]}, 32, v{vBb[0]}
    v_mov_b32 v{vA[0]}, v{vAb[0]}
    v_mov_b32 v{vA[1]}, v{vAb[1]}
    v_mov_b32 v{vB[0]}, v{vBb[0]}
    v_mov_b32 v{vB[1]}, v{vBb[1]}
    ''')
    vB2 = [T0 + 4, T0 + 5]
    for i in range(64): k(f'v_mov_b32 v{ACC+i}, 0')
    def reads(sb, st):
        out = []
        for mb in range(MB):
            out.append(f'ds_read_b128 v[{fA(st,mb)}:{fA(st,mb)+3}], v{vA[sb]} offset:{mb*2048}')
        for nb in range(NB):
            reg = vB[nb & 1] if nb < 2 else vB2[nb & 1]
            for h in range(2):
                out.append(f'ds_read_b64_tr_b16 v[{fB(st,nb)+2*h}:{fB(st,nb)+2*h+1}], v{reg} offset:{(32*sb+4*h)*128}')
        return out
    def mfmas(st):
        out = []
        for mb in range(MB):
            for nb in range(NB):
                a = ACC + (mb * NB + nb) * 4
                out.append(f'v_mfma_f32_16x16x32_bf16 v[{a}:{a+3}], v[{fB(st,nb)}:{fB(st,nb)+3}], v[{fA(st,mb)}:{fA(st,mb)+3}], v[{a}:{a+3}]')
        return out
    def inter(mf, rd):
        for i, m in enumerate(mf):
            k(m)
            for x in rd[i:i+1]: k(x)
    k(f'''
    v_xor_b32 v{vB2[0]}, 64, v{vB[0]}
    v_xor_b32 v{vB2[1]}, 64, v{vB[1]}
    s_mov_b32 s39, 0
    s_mov_b32 s35, 0
    s_barrier
    ''')
    for r in reads(0, 0): k(r)
    def stage_body(last):
        k('s_waitcnt lgkmcnt(0)')
        inter(mfmas(0), reads(1, 1))
        k('s_waitcnt lgkmcnt(0)')
        if not last:
            k(f'''
            s_barrier
            s_add_u32 s39, s39, {ST}
            s_cmp_ge_u32 s39, {NSL*ST}
            s_cselect_b32 s39, 0, s39
            v_add_u32 v{vA[0]}, s39, v{vAb[0]}
            v_add_u32 v{vA[1]}, s39, v{vAb[1]}
            v_add_u32 v{vB[0]}, s39, v{vBb[0]}
            v_add_u32 v{vB[1]}, s39, v{vBb[1]}
            v_xor_b32 v{vB2[0]}, 64, v{vB[0]}
            v_xor_b32 v{vB2[1]}, 64, v{vB[1]}
            ''')
            inter(mfmas(1), reads(0, 0))
        else:
            for x in mfmas(1): k(x)
    k(f'{L("cloop")}:')
    stage_body(False)
    k(f'''
    s_add_u32 s35, s35, 1
    s_cmp_lt_u32 s35, {NS-1}
    s_cbranch_scc1 {L("cloop")}
    ''')
    stage_body(True)
    k(f'''
    v_and_b32 v{T0+1}, 15, v0
    v_lshrrev_b32 v{T0+2}, 4, v0
    s_lshl_b32 s46, s36, 6
    s_add_u32 s46, s46, s32
    v_add_u32 v{T0+1}, s46, v{T0+1}
    v_lshlrev_b32 v{T0+1}, 12, v{T0+1}
    s_lshl_b32 s46, s33, 9
    s_lshl_b32 s47, s37, 8
    s_add_u32 s46, s46, s47
    s_lshl_b32 s47, s45, 23
    s_add_u32 s46, s46, s47
    v_lshl_add_u32 v{T0+2}, v{T0+2}, 4, s46
    v_add_u32 v{T0}, v{T0+1}, v{T0+2}
    ''')
    for mb in range(MB):
        k(f's_mov_b32 s46, {mb*16*4096}')
        for nb in range(NB):
            a = ACC + (mb * NB + nb) * 4
            k(f'buffer_store_dwordx4 v[{a}:{a+3}], v{T0}, s[20:23], s46 offen offset:{nb*64}')
    k('s_endpgm')
    NVC = T0 + 8
    k(f'''
    {L("loader")}:
    s_sub_u32 s34, s34, 4
    v_lshrrev_b32 v1, 3, v0
    v_and_b32 v2, 7, v0
    v_lshrrev_b32 v3, 4, v0
    s_lshl_b32 s46, s34, 5
    s_add_u32 s46, s46, s32
    s_mov_b32 s48, {lda}
    ''')
    for a in range(4):
        k(f'''
        v_add_u32 v4, {(4*a)&7}, v3
        v_and_b32 v4, 7, v4
        v_xor_b32 v4, v2, v4
        v_lshlrev_b32 v4, 4, v4
        v_add_u32 v5, s46, v1
        v_add_u32 v5, {8*a}, v5
        v_mul_lo_u32 v5, v5, s48
        v_add_u32 v{8+a}, v5, v4
        ''')
    k(f'''
    s_and_b32 s46, s34, 1
    s_lshl_b32 s46, s46, 5
    s_lshl_b32 s47, s33, 8
    s_lshr_b32 s49, s34, 1
    s_lshl_b32 s49, s49, 7
    s_add_u32 s47, s47, s49
    ''')
    for b in range(4):
        k(f'''
        v_and_b32 v4, 1, v3
        v_or_b32 v4, {(b&1)<<1}, v4
        v_lshrrev_b32 v5, 1, v2
        v_xor_b32 v4, v5, v4
        v_lshlrev_b32 v4, 5, v4
        v_and_b32 v5, 1, v2
        v_lshl_add_u32 v4, v5, 4, v4
        v_add_u32 v5, s46, v1
        v_add_u32 v5, {8*b}, v5
        v_lshlrev_b32 v5, 11, v5
        v_add3_u32 v{16+b}, v5, v4, s47
        ''')
    k(f'''
    s_lshl_b32 s50, s34, 12
    s_lshl_b32 s51, s34, 12
    s_add_u32 s51, s51, 16384
    s_mul_i32 s52, s45, {KH*2}
    s_mul_i32 s53, s45, {KH*ldb}
    s_mov_b32 s39, 0
    ''')
    def issue():
        for a in range(4):
            k(f'''
            s_add_u32 s54, s39, s50
            s_add_u32 m0, s54, {a*1024}
            s_nop 0
            buffer_load_dwordx4 v{8+a}, s[8:11], s52 offen lds
            ''')
        for b in range(4):
            k(f'''
            s_add_u32 s54, s39, s51
            s_add_u32 m0, s54, {b*1024}
            s_nop 0
            buffer_load_dwordx4 v{16+b}, s[12:15], s53 offen lds
            ''')
        k(f'''
        s_add_u32 s52, s52, 128
        s_add_u32 s53, s53, {64*ldb}
        s_add_u32 s39, s39, {ST}
        s_cmp_ge_u32 s39, {NSL*ST}
        s_cselect_b32 s39, 0, s39
        ''')
    for i in range(NSL): issue()
    k(f'''
    s_waitcnt vmcnt({8*(NSL-1)})
    s_barrier
    s_mov_b32 s35, 0
    {L("lloop")}:
    s_waitcnt vmcnt({8*(NSL-2)})
    s_barrier
    ''')
    issue()
    k(f'''
    s_add_u32 s35, s35, 1
    s_cmp_lt_u32 s35, {NS-NSL}
    s_cbranch_scc1 {L("lloop")}
    ''')
    for r in range(NSL - 1):
        k(f's_waitcnt vmcnt({8*max(0, NSL-2-r)})\ns_barrier')
    k(f'{L("end")}:\ns_endpgm')
    return k, dict(vgpr=max(NVC, 24), sgpr=64, grid=256, block=512, lds=NSL * ST)
```

```python
from asmlib import Kernel
from gen import *

def gen_gu2():
    name = 'gu_kernel'
    k = Kernel(name)
    L = lambda s: f'L_{name}_{s}'
    lda = 2048; ldb = 7168; NS = 16
    SL = 65536
    ACC = 4
    def acc(mb, mt, nb): return ACC + ((mb * 2 + mt) * 7 + nb) * 4
    FA = ACC + 112
    FB = FA + 16
    VA = FB + 56
    VB = VA + 2
    GD = VB + 4
    T = GD + 4
    NV = T + 8
    k(f'''
    s_cmp_ge_u32 s2, 256
    s_cbranch_scc1 {L('end')}
    s_load_dwordx2 s[4:5], s[0:1], {KA['ws']}
    s_load_dwordx4 s[40:43], s[0:1], {KA['wg']}
    v_lshrrev_b32 v1, 6, v0
    v_and_b32 v0, 63, v0
    s_nop 0
    v_readfirstlane_b32 s34, v1
    s_and_b32 s3, s2, 7
    s_lshr_b32 s35, s2, 3
    s_and_b32 s32, s3, 1
    s_lshl_b32 s32, s32, 2
    s_and_b32 s36, s35, 3
    s_add_u32 s32, s32, s36
    s_lshr_b32 s33, s3, 1
    s_lshl_b32 s33, s33, 3
    s_lshr_b32 s36, s35, 2
    s_add_u32 s33, s33, s36
    s_lshl_b32 s32, s32, 8
    s_waitcnt lgkmcnt(0)
    ''')
    if 'stamp' in GX:
        k('s_memtime s[60:61]\ns_load_dwordx2 s[56:57], s[0:1], 96\ns_waitcnt lgkmcnt(0)')
    srd(k, 8, 4, 5, 2048 * lda, WS_H2)
    srd(k, 20, 4, 5, 2048 * ldb, WS_GU)
    k(f'''
    s_cmp_ge_u32 s34, 4
    s_cselect_b32 s12, s42, s40
    s_cselect_b32 s13, s43, s41
    s_mov_b32 s14, {1024*ldb}
    s_mov_b32 s15, 0x00020000
    v_and_b32 v{T}, 15, v0
    v_lshrrev_b32 v{T+1}, 4, v0
    v_lshrrev_b32 v{T+2}, 1, v{T}
    v_xor_b32 v{T+2}, v{T+1}, v{T+2}
    v_lshlrev_b32 v{T+2}, 4, v{T+2}
    v_lshl_add_u32 v{T+2}, v{T}, 7, v{T+2}
    s_lshl_b32 s38, s34, 12
    v_add_u32 v{VA}, s38, v{T+2}
    v_xor_b32 v{VA+1}, 64, v{VA}
    v_lshrrev_b32 v{T+2}, 3, v{T}
    v_and_b32 v{T+3}, 1, v{T+1}
    v_lshl_or_b32 v{T+2}, v{T+3}, 1, v{T+2}
    v_lshlrev_b32 v{T+2}, 5, v{T+2}
    v_and_b32 v{T+3}, 3, v{T}
    v_lshl_add_u32 v{T+2}, v{T+3}, 3, v{T+2}
    v_lshrrev_b32 v{T+3}, 2, v{T}
    v_lshl_add_u32 v{T+3}, v{T+1}, 3, v{T+3}
    v_lshl_add_u32 v{VB}, v{T+3}, 7, v{T+2}
    v_add_u32 v{VB}, 32768, v{VB}
    v_xor_b32 v{VB+1}, 32, v{VB}
    v_xor_b32 v{VB+2}, 64, v{VB}
    v_xor_b32 v{VB+3}, 96, v{VB}
    v_lshrrev_b32 v{T+2}, 3, v0
    v_and_b32 v{T+3}, 7, v0
    s_lshl_b32 s37, s34, 5
    s_add_u32 s37, s37, s32
    ''')
    for a in range(2):
        k(f'''
        v_add_u32 v{T+5}, {4*a}, v{T+1}
        v_and_b32 v{T+5}, 7, v{T+5}
        v_xor_b32 v{T+5}, v{T+3}, v{T+5}
        v_lshlrev_b32 v{T+5}, 4, v{T+5}
        v_add_u32 v{T+6}, s37, v{T+2}
        v_add_u32 v{T+6}, {8*a}, v{T+6}
        v_lshl_add_u32 v{GD+a}, v{T+6}, 11, v{T+5}
        ''')
    k(f'''
    s_and_b32 s37, s34, 1
    s_lshl_b32 s37, s37, 5
    s_mul_i32 s38, s33, 224
    s_bfe_u32 s39, s34, 0x10001
    s_lshl_b32 s39, s39, 7
    s_add_u32 s38, s38, s39
    s_mov_b32 s48, {ldb}
    ''')
    for b in range(2):
        k(f'''
        v_and_b32 v{T+5}, 1, v{T+1}
        v_or_b32 v{T+5}, {b<<1}, v{T+5}
        v_lshrrev_b32 v{T+6}, 1, v{T+3}
        v_xor_b32 v{T+5}, v{T+6}, v{T+5}
        v_lshlrev_b32 v{T+5}, 5, v{T+5}
        v_and_b32 v{T+6}, 1, v{T+3}
        v_lshl_add_u32 v{T+5}, v{T+6}, 4, v{T+5}
        v_add_u32 v{T+6}, s37, v{T+2}
        v_add_u32 v{T+6}, {8*b}, v{T+6}
        v_mul_lo_u32 v{T+6}, v{T+6}, s48
        v_add3_u32 v{GD+2+b}, v{T+6}, v{T+5}, s38
        ''')
    k(f'''
    s_lshl_b32 s50, s34, 12
    s_lshl_b32 s51, s34, 12
    s_add_u32 s51, s51, 32768
    s_mov_b32 s52, 0
    s_mov_b32 s53, 0
    s_mov_b32 s39, 0
    ''')
    for i in range(112): k(f'v_mov_b32 v{ACC+i}, 0')
    def issue():
        for a in range(4):
            k(f'''
            s_add_u32 s54, s39, s50
            s_add_u32 m0, s54, {a*1024}
            s_add_u32 s55, s52, {(a>>1)*16*lda}
            buffer_load_dwordx4 v{GD+(a&1)}, s[8:11], s55 offen lds
            ''')
        for b in range(4):
            k(f'''
            s_add_u32 s54, s39, s51
            s_add_u32 m0, s54, {b*1024}
            s_add_u32 s55, s53, {(b>>1)*16*ldb}
            buffer_load_dwordx4 v{GD+2+(b&1)}, s[12:15], s55 offen lds
            ''')
        k(f'''
        s_add_u32 s52, s52, 128
        s_add_u32 s53, s53, {64*ldb}
        s_xor_b32 s39, s39, {SL}
        ''')
    def reads(ms):
        sb, mt = ms >> 1, ms & 1
        o = []
        if mt == 0:
            for mb in range(2):
                r = FA + sb * 8 + mb * 4
                o.append(f'ds_read_b128 v[{r}:{r+3}], v{VA+sb} offset:{mb*2048}')
        for nb in range(7):
            for h in range(2):
                r = FB + (ms & 1) * 28 + nb * 4 + 2 * h
                o.append(f'ds_read_b64_tr_b16 v[{r}:{r+1}], v{VB+(nb&3)} offset:{(mt*2+(nb>>2))*8192+(32*sb+4*h)*128}')
        return o
    def mfmas(ms):
        sb, mt = ms >> 1, ms & 1
        o = []
        for nb in range(7):
            for mb in range(2):
                a = acc(mb, mt, nb); b = FB + (ms & 1) * 28 + nb * 4; x = FA + sb * 8 + mb * 4
                o.append(f'v_mfma_f32_16x16x32_bf16 v[{a}:{a+3}], v[{b}:{b+3}], v[{x}:{x+3}], v[{a}:{a+3}]')
        return o
    def inter(mf, rd):
        ri = 0
        for i, m in enumerate(mf):
            k(m)
            want = min(len(rd), (i + 1) * len(rd) // 10 + 1)
            while ri < want: k(rd[ri]); ri += 1
        for x in rd[ri:]: k(x)
    issue(); issue()
    k('s_waitcnt vmcnt(8)\ns_barrier\ns_mov_b32 s35, 0')
    if 'stamp' in GX: k('s_memtime s[62:63]\ns_waitcnt lgkmcnt(0)')
    for x in reads(0): k(x)
    def stage(last, do_issue):
        for ms in range(4):
            k('s_waitcnt lgkmcnt(0)')
            if ms < 3:
                if ms == 0 and getattr(stage, 'pending', False) and 'dmaspread' in GX:
                    issue(); stage.pending = False
                inter(mfmas(ms), reads(ms + 1))
            elif not last:
                k('s_waitcnt vmcnt(0)\ns_barrier')
                for i in range(2): k(f'v_xor_b32 v{VA+i}, {SL}, v{VA+i}')
                for i in range(4): k(f'v_xor_b32 v{VB+i}, {SL}, v{VB+i}')
                mf = mfmas(ms); rd = reads(0)
                if 'dmafirst' in GX:
                    if do_issue: issue()
                    inter(mf, rd)
                elif 'dmaspread' in GX:
                    inter(mf, rd)
                    stage.pending = do_issue
                else:
                    inter(mf[:10], rd)
                    if do_issue: issue()
                    for x in mf[10:]: k(x)
            else:
                for x in mfmas(ms): k(x)
    k(f'{L("loop")}:')
    stage(False, True)
    k(f'''
    s_add_u32 s35, s35, 1
    s_cmp_lt_u32 s35, {NS-2}
    s_cbranch_scc1 {L("loop")}
    ''')
    stage(False, False)
    stage(True, False)
    if 'stamp' in GX: k('s_nop 15\ns_memtime s[64:65]\ns_waitcnt lgkmcnt(0)')
    OST = 240
    t = T + 2
    k(f'''
    v_and_b32 v{T}, 15, v0
    v_lshrrev_b32 v{T+1}, 4, v0
    v_mul_u32_u24 v{T}, {OST}, v{T}
    v_lshl_add_u32 v{T}, v{T+1}, 3, v{T}
    s_mul_i32 s38, s34, {32*OST}
    v_add_u32 v{T}, s38, v{T}
    v_mov_b32 v{T+1}, 0x{LOG2E:x}
    ''')
    for mb in range(2):
        for nb in range(7):
            g = acc(mb, 0, nb); u = acc(mb, 1, nb)
            for e in range(4): rnd(k, g + e, g + e)
            for e in range(4): k(f'v_mul_f32 v{t+e}, v{T+1}, v{g+e}')
            for e in range(4): k(f'v_exp_f32 v{t+e}, -v{t+e}')
            for e in range(4): rnd(k, u + e, u + e)
            for e in range(4): k(f'v_add_f32 v{t+e}, 1.0, v{t+e}')
            for e in range(4): k(f'v_rcp_f32 v{t+e}, v{t+e}')
            for e in range(4): k(f'v_mul_f32 v{g+e}, v{g+e}, v{t+e}')
            for e in range(4): rnd(k, g + e, g + e)
            for e in range(4): k(f'v_mul_f32 v{g+e}, v{g+e}, v{u+e}')
            k(f'''
            v_cvt_pk_bf16_f32 v{g}, v{g}, v{g+1}
            v_cvt_pk_bf16_f32 v{g+1}, v{g+2}, v{g+3}
            ds_write_b64 v{T}, v[{g}:{g+1}] offset:{mb*16*OST+nb*32}
            ''')
    k(f'''
    s_waitcnt lgkmcnt(0)
    s_lshl_b32 s37, s34, 5
    s_add_u32 s37, s37, s32
    s_mul_i32 s39, s33, 224
    s_mov_b32 s46, 4682
    s_mov_b32 s48, {ldb}
    ''')
    for i in range(7):
        a = ACC + 8 * i
        k(f'''
        v_add_u32 v{t}, {64*i}, v0
        v_mul_u32_u24 v{t+1}, s46, v{t}
        v_lshrrev_b32 v{t+1}, 16, v{t+1}
        v_mul_u32_u24 v{t+2}, 14, v{t+1}
        v_sub_u32 v{t+2}, v{t}, v{t+2}
        v_mul_u32_u24 v{t+3}, {OST}, v{t+1}
        v_lshl_add_u32 v{t+3}, v{t+2}, 4, v{t+3}
        v_add_u32 v{t+3}, s38, v{t+3}
        ds_read_b128 v[{a}:{a+3}], v{t+3}
        v_add_u32 v{t+1}, s37, v{t+1}
        v_mul_lo_u32 v{t+1}, v{t+1}, s48
        v_lshl_add_u32 v{t+2}, v{t+2}, 4, s39
        v_add_u32 v{a+4}, v{t+1}, v{t+2}
        ''')
    for i in range(7):
        a = ACC + 8 * i
        k(f's_waitcnt lgkmcnt({6-i})')
        k(f'buffer_store_dwordx4 v[{a}:{a+3}], v{a+4}, s[20:23], 0 offen')
    if 'stamp' in GX:
        k(f'''
        s_waitcnt vmcnt(0)
        s_memtime s[66:67]
        s_waitcnt lgkmcnt(0)
        s_sub_u32 s62, s62, s60
        s_sub_u32 s64, s64, s60
        s_sub_u32 s66, s66, s60
        s_mov_b32 s58, 256
        s_mov_b32 s59, 0x00020000
        v_mov_b32 v4, s62
        v_mov_b32 v5, s64
        v_mov_b32 v6, s66
        v_mov_b32 v7, 0
        s_and_b32 s64, s34, 3
        s_lshl_b32 s64, s64, 4
        v_mov_b32 v1, s64
        s_cmp_lg_u32 s2, 100
        s_cbranch_scc1 {L('end')}
        v_cmp_eq_u32 vcc, 0, v0
        s_and_saveexec_b64 s[68:69], vcc
        buffer_store_dwordx4 v[4:7], v1, s[56:59], 0 offen
        ''')
    k(f'{L("end")}:\ns_endpgm')
    return k, dict(vgpr=NV, sgpr=72, grid=256, block=512, lds=2 * SL)
```

```python
import sys, os
sys.path.insert(0, 'gen')
GX = os.environ.get('GX', '')
from asmlib import Kernel

KA = dict(x=0, k=8, v=16, wq=24, wo=32, bx=40, wg=48, wu=56, wd=64, c=72, wmod=80, out=88, dbg=96, ws=104)
WS_MOD = 0
WS_H1 = 0x100000
WS_X2 = 0x500000
WS_H2 = 0x900000
WS_Q = 0x1000000
WS_O = 0x2000000
WS_GU = 0x3000000
LOG2E = 0x3fb8aa3b
SCALE = 0x3db504f3

def srd(k, d, base_lo, base_hi, nbytes, off=0):
    if off:
        k(f's_add_u32 s{d}, s{base_lo}, 0x{off:x}')
        k(f's_addc_u32 s{d+1}, s{base_hi}, 0')
    else:
        k(f's_mov_b32 s{d}, s{base_lo}')
        k(f's_mov_b32 s{d+1}, s{base_hi}')
    k(f's_mov_b32 s{d+2}, 0x{nbytes:x}')
    k(f's_mov_b32 s{d+3}, 0x00020000')

def rnd(k, d, s):
    k(f'v_cvt_pk_bf16_f32 v{d}, 0, v{s}')

def gen_mod():
    k = Kernel('mod_kernel')
    k(f'''
    s_cmp_ge_u32 s2, 192
    s_cbranch_scc1 L_mod_end
    s_load_dwordx2 s[4:5], s[0:1], {KA['c']}
    s_load_dwordx2 s[6:7], s[0:1], {KA['wmod']}
    s_load_dwordx2 s[8:9], s[0:1], {KA['ws']}
    v_lshrrev_b32 v1, 2, v0
    v_and_b32 v2, 3, v0
    v_lshlrev_b32 v3, 1, v1
    s_mov_b32 s3, 12288
    v_mul_lo_u32 v4, v1, s3
    v_lshl_add_u32 v4, v2, 4, v4
    s_lshl_b32 s3, s2, 6
    v_add_u32 v4, s3, v4
    s_waitcnt lgkmcnt(0)
    ''')
    srd(k, 12, 4, 5, 2048)
    srd(k, 16, 6, 7, 1024 * 6144 * 2)
    srd(k, 20, 8, 9, 6144 * 4, WS_MOD)
    for p in range(16):
        k(f'buffer_load_ushort v{10+p}, v3, s[12:15], 0 offen offset:{p*128}')
    for p in range(16):
        k(f's_mov_b32 s24, {p*786432}')
        k(f'buffer_load_dwordx4 v[{32+4*p}:{35+4*p}], v4, s[16:19], s24 offen')
    k('s_waitcnt vmcnt(16)')
    k(f's_mov_b32 s25, 0x{LOG2E:x}')
    for p in range(16):
        x = 10 + p
        k(f'''
        v_lshlrev_b32 v{x}, 16, v{x}
        v_mul_f32 v5, s25, v{x}
        v_exp_f32 v5, -v5
        v_add_f32 v5, 1.0, v5
        v_rcp_f32 v6, v5
        v_mul_f32 v7, v{x}, v6
        v_fma_f32 v8, -v7, v5, v{x}
        v_fma_f32 v7, v8, v6, v7
        ''')
        rnd(k, x, 7)
    for i in range(8):
        k(f'v_mov_b32 v{100+i}, 0')
    k('s_mov_b32 s26, 0xffff0000')
    for p in range(16):
        k(f's_waitcnt vmcnt({15-p})')
        for i in range(4):
            d = 32 + 4 * p + i
            k(f'''
            v_lshlrev_b32 v5, 16, v{d}
            v_and_b32 v6, s26, v{d}
            v_fmac_f32 v{100+2*i}, v{10+p}, v5
            v_fmac_f32 v{101+2*i}, v{10+p}, v6
            ''')
    k(f'''
    v_lshlrev_b32 v5, 5, v0
    ds_write_b128 v5, v[100:103]
    ds_write_b128 v5, v[104:107] offset:16
    v_and_b32 v6, 31, v0
    v_lshrrev_b32 v7, 5, v0
    v_lshlrev_b32 v8, 10, v7
    v_lshl_add_u32 v8, v6, 2, v8
    s_waitcnt lgkmcnt(0)
    s_barrier
    ''')
    for r in range(8):
        k(f'ds_read_b32 v{10+r}, v8 offset:{r*128}')
    k('s_waitcnt lgkmcnt(0)')
    for r in range(1, 8):
        k(f'v_add_f32 v10, v10, v{10+r}')
    k(f'''
    v_lshlrev_b32 v8, 7, v7
    v_lshl_add_u32 v8, v6, 2, v8
    ds_write_b32 v8, v10 offset:8192
    v_lshlrev_b32 v9, 2, v6
    s_waitcnt lgkmcnt(0)
    s_barrier
    ''')
    for r in range(8):
        k(f'ds_read_b32 v{10+r}, v9 offset:{8192+r*128}')
    k('s_waitcnt lgkmcnt(0)')
    for r in range(1, 8):
        k(f'v_add_f32 v10, v10, v{10+r}')
    rnd(k, 10, 10)
    k(f'''
    s_lshl_b32 s3, s2, 7
    v_add_u32 v9, s3, v9
    v_cmp_gt_u32 vcc, 32, v0
    s_and_saveexec_b64 s[28:29], vcc
    s_cbranch_execz L_mod_end
    buffer_store_dword v10, v9, s[20:23], 0 offen
    L_mod_end:
    s_endpgm
    ''')
    return k, dict(vgpr=112, sgpr=32, grid=192, block=256, lds=16384)

def wave_sum(k, v, t):
    for off in (0x041F, 0x081F, 0x101F, 0x201F, 0x401F):
        k(f'''
        ds_swizzle_b32 v{t}, v{v} offset:0x{off:x}
        s_waitcnt lgkmcnt(0)
        v_add_f32 v{v}, v{v}, v{t}
        ''')
    k(f'''
    v_mov_b32 v{t}, v{v}
    v_permlane32_swap_b32 v{v}, v{t}
    v_add_f32 v{v}, v{v}, v{t}
    ''')

def gen_ln(name, src_from_ws, src_off, shift_idx, scale_idx, dst_off, pf=None, red=False):
    k = Kernel(name)
    k(f'''
    s_cmp_ge_u32 s2, 512
    s_cbranch_scc1 L_{name}_end
    s_load_dwordx2 s[4:5], s[0:1], {KA['ws'] if src_from_ws else KA['x']}
    s_load_dwordx2 s[8:9], s[0:1], {KA['ws']}
    s_load_dwordx2 s[28:29], s[0:1], {pf if pf is not None else KA['ws']}
    v_lshrrev_b32 v1, 6, v0
    v_and_b32 v2, 63, v0
    s_lshl_b32 s3, s2, 2
    v_add_u32 v1, s3, v1
    v_lshlrev_b32 v33, 12, v1
    v_lshl_add_u32 v33, v2, 6, v33
    v_lshlrev_b32 v1, 11, v1
    v_lshl_add_u32 v1, v2, 4, v1
    v_lshlrev_b32 v3, 5, v2
    s_waitcnt lgkmcnt(0)
    ''')
    srd(k, 12, 4, 5, 2048 * 2048, src_off)
    srd(k, 16, 8, 9, 6144 * 4, WS_MOD)
    srd(k, 20, 8, 9, 2048 * 2048, dst_off)
    k(f'''
    buffer_load_dwordx4 v[4:7], v1, s[12:15], 0 offen
    buffer_load_dwordx4 v[8:11], v1, s[12:15], 0 offen offset:1024
    s_mov_b32 s24, {shift_idx*4096}
    s_mov_b32 s25, {scale_idx*4096}
    buffer_load_dwordx4 v[48:51], v3, s[16:19], s24 offen
    buffer_load_dwordx4 v[52:55], v3, s[16:19], s24 offen offset:16
    buffer_load_dwordx4 v[56:59], v3, s[16:19], s24 offen offset:2048
    buffer_load_dwordx4 v[60:63], v3, s[16:19], s24 offen offset:2064
    buffer_load_dwordx4 v[64:67], v3, s[16:19], s25 offen
    buffer_load_dwordx4 v[68:71], v3, s[16:19], s25 offen offset:16
    buffer_load_dwordx4 v[72:75], v3, s[16:19], s25 offen offset:2048
    buffer_load_dwordx4 v[76:79], v3, s[16:19], s25 offen offset:2064
    s_mov_b32 s26, 0xffff0000
    ''')
    if red:
        srd(k, 36, 8, 9, 2 * 2048 * 4096, 0x4000000)
        srd(k, 40, 8, 9, 2048 * 2048, WS_X2)
        k(f'''
        v_lshlrev_b32 v34, 1, v1
        s_mov_b32 s27, 0x800000
        s_mov_b32 s30, {2*4096}
        buffer_load_dwordx4 v[80:83], v34, s[36:39], 0 offen
        buffer_load_dwordx4 v[84:87], v34, s[36:39], 0 offen offset:16
        buffer_load_dwordx4 v[88:91], v34, s[36:39], 0 offen offset:2048
        buffer_load_dwordx4 v[92:95], v34, s[36:39], 0 offen offset:2064
        buffer_load_dwordx4 v[96:99], v34, s[36:39], s27 offen
        buffer_load_dwordx4 v[100:103], v34, s[36:39], s27 offen offset:16
        buffer_load_dwordx4 v[104:107], v34, s[36:39], s27 offen offset:2048
        buffer_load_dwordx4 v[108:111], v34, s[36:39], s27 offen offset:2064
        buffer_load_dwordx4 v[112:115], v3, s[16:19], s30 offen
        buffer_load_dwordx4 v[116:119], v3, s[16:19], s30 offen offset:16
        buffer_load_dwordx4 v[120:123], v3, s[16:19], s30 offen offset:2048
        buffer_load_dwordx4 v[124:127], v3, s[16:19], s30 offen offset:2064
        s_waitcnt vmcnt(0)
        ''')
    else:
        k('s_waitcnt vmcnt(8)')
    for i in range(8):
        k(f'v_lshlrev_b32 v{16+2*i}, 16, v{4+i}')
        k(f'v_and_b32 v{17+2*i}, s26, v{4+i}')
    if red:
        for i in range(16):
            k(f'v_add_f32 v{80+i}, v{80+i}, v{96+i}')
        for i in range(16): rnd(k, 80 + i, 80 + i)
        for i in range(16): k(f'v_mul_f32 v{80+i}, v{80+i}, v{112+i}')
        for i in range(16): rnd(k, 80 + i, 80 + i)
        for i in range(16): k(f'v_add_f32 v{16+i}, v{16+i}, v{80+i}')
        for i in range(16): rnd(k, 16 + i, 16 + i)
        for i in range(8):
            k(f'v_cvt_pk_bf16_f32 v{80+i}, v{16+2*i}, v{17+2*i}')
        k('''
        buffer_store_dwordx4 v[80:83], v1, s[40:43], 0 offen
        buffer_store_dwordx4 v[84:87], v1, s[40:43], 0 offen offset:1024
        ''')
    k('v_add_f32 v12, v16, v17')
    for i in range(2, 16):
        k(f'v_add_f32 v12, v12, v{16+i}')
    wave_sum(k, 12, 13)
    k('v_mul_f32 v12, 0x3a800000, v12')
    k('v_mov_b32 v14, 0')
    for i in range(16):
        k(f'v_sub_f32 v13, v{16+i}, v12')
        k(f'v_fmac_f32 v14, v13, v13')
    wave_sum(k, 14, 13)
    k('v_mul_f32 v14, 0x3a800000, v14')
    rnd(k, 12, 12)
    rnd(k, 14, 14)
    k('v_add_f32 v14, 0x3727c5ac, v14')
    rnd(k, 14, 14)
    k('v_sqrt_f32 v14, v14')
    rnd(k, 14, 14)
    k('v_rcp_f32 v15, v14')
    k('s_waitcnt vmcnt(0)')
    for i in range(16):
        x = 16 + i
        k(f'v_sub_f32 v{x}, v{x}, v12')
        rnd(k, x, x)
        k(f'''
        v_mul_f32 v13, v{x}, v15
        v_fma_f32 v32, -v13, v14, v{x}
        v_fma_f32 v13, v32, v15, v13
        ''')
        rnd(k, 13, 13)
        k(f'v_add_f32 v32, 1.0, v{64+i}')
        rnd(k, 32, 32)
        k(f'v_mul_f32 v13, v13, v32')
        rnd(k, 13, 13)
        k(f'v_add_f32 v{x}, v13, v{48+i}')
    for i in range(8):
        k(f'v_cvt_pk_bf16_f32 v{4+i}, v{16+2*i}, v{17+2*i}')
    k(f'''
    buffer_store_dwordx4 v[4:7], v1, s[20:23], 0 offen
    buffer_store_dwordx4 v[8:11], v1, s[20:23], 0 offen offset:1024
    ''')
    if pf is not None:
        srd(k, 24, 28, 29, 0x800000)
        k('buffer_load_dword v34, v33, s[24:27], 0 offen')
    k(f'''
    L_{name}_end:
    s_endpgm
    ''')
    return k, dict(vgpr=128 if red else 80, sgpr=48, grid=512, block=256, lds=0)

STG = 49152
def gen_gemm(name, cfg):
    BM, NBS, U, K = cfg['BM'], cfg['NBS'], cfg['U'], cfg['K']
    MB = BM // 32; NB = 2 * NBS; S = 2 * U
    NS = K // (64 * U)
    lda = cfg['lda']; ldb = cfg['ldb']; ldo = cfg['ldo']
    MT, NT = cfg['MT'], cfg['NT']
    nwg = MT * NT
    epi = cfg['epi']
    ROWB = 256 if epi == 'q' else 128
    OST = ROWB + 16
    last_slot = (NS - 1) % 3
    OBASE = STG if last_slot != 1 else 2 * STG
    k = Kernel(name)
    L = lambda s: f'L_{name}_{s}'
    k(f'''
    s_cmp_ge_u32 s2, {nwg}
    s_cbranch_scc1 {L('end')}
    s_load_dwordx2 s[4:5], s[0:1], {KA['ws']}
    s_load_dwordx2 s[6:7], s[0:1], {cfg['B'][0]}
    s_load_dwordx2 s[40:41], s[0:1], {cfg['B'][-1]}
    s_load_dwordx2 s[42:43], s[0:1], {KA['x']}
    s_load_dwordx2 s[44:45], s[0:1], {KA['out']}
    v_lshrrev_b32 v1, 6, v0
    v_and_b32 v0, 63, v0
    s_nop 0
    v_readfirstlane_b32 s34, v1
    s_and_b32 s3, s2, 7
    s_lshr_b32 s35, s2, 3
    ''')
    gx = MT // 4
    gsh = gx.bit_length() - 1
    k(f'''
    s_and_b32 s32, s3, {gx-1}
    s_lshl_b32 s32, s32, 2
    s_and_b32 s36, s35, 3
    s_add_u32 s32, s32, s36
    s_lshr_b32 s33, s3, {gsh}
    s_mul_i32 s33, s33, {NT//(8//gx)}
    s_lshr_b32 s36, s35, 2
    s_add_u32 s33, s33, s36
    s_mul_i32 s32, s32, {BM}
    s_waitcnt lgkmcnt(0)
    ''')
    if 'stamp' in GX:
        k('''
        s_memtime s[60:61]
        s_load_dwordx2 s[56:57], s[0:1], 96
        s_waitcnt lgkmcnt(0)
        ''')
    srd(k, 8, 4, 5, 2048 * lda, cfg['Aoff'])
    srd(k, 12, 6, 7, K * ldb)
    srd(k, 16, 40, 41, K * ldb)
    if epi == 'q':
        srd(k, 20, 4, 5, 2048 * ldo, cfg['Ooff'])
    elif epi == 'gu':
        srd(k, 20, 4, 5, 2048 * ldo, cfg['Ooff'])
    else:
        if cfg['out_is_out']:
            srd(k, 20, 44, 45, 2048 * ldo)
        else:
            srd(k, 20, 4, 5, 2048 * ldo, cfg['Ooff'])
        if cfg['res_from_ws']:
            srd(k, 24, 4, 5, 2048 * 2048, cfg['Roff'])
        else:
            srd(k, 24, 42, 43, 2048 * 2048)
        srd(k, 28, 4, 5, 6144 * 4, WS_MOD)
    k(f'''
    s_cmp_ge_u32 s34, 4
    s_cbranch_scc1 {L('loader')}
    ''')
    ACC = 4
    F0 = ACC + MB * NB * 4
    FS = (MB + NB) * 4
    def fA(st, mb): return F0 + st * FS + mb * 4
    def fB(st, nb): return F0 + st * FS + MB * 4 + nb * 4
    AD = F0 + 2 * FS
    vA = [AD, AD + 1]; vB = [AD + 2, AD + 3]; vAb = [AD + 4, AD + 5]; vBb = [AD + 6, AD + 7]
    T0 = AD + 8
    k(f'''
    s_and_b32 s36, s34, 1
    s_lshr_b32 s37, s34, 1
    v_and_b32 v{T0}, 15, v0
    v_lshrrev_b32 v{T0+1}, 4, v0
    v_lshrrev_b32 v{T0+2}, 1, v{T0}
    v_xor_b32 v{T0+2}, v{T0+1}, v{T0+2}
    v_lshlrev_b32 v{T0+2}, 4, v{T0+2}
    v_lshl_add_u32 v{T0+2}, v{T0}, 7, v{T0+2}
    s_mul_i32 s38, s36, {(BM//2)*128}
    v_add_u32 v{vAb[0]}, s38, v{T0+2}
    v_xor_b32 v{vAb[1]}, 64, v{vAb[0]}
    ''')
    k(f'''
    v_lshrrev_b32 v{T0+2}, 3, v{T0}
    v_and_b32 v{T0+3}, 1, v{T0+1}
    v_lshl_or_b32 v{T0+2}, v{T0+3}, 1, v{T0+2}
    s_lshl_b32 s38, s37, 1
    v_xor_b32 v{T0+2}, s38, v{T0+2}
    v_lshlrev_b32 v{T0+2}, 5, v{T0+2}
    v_and_b32 v{T0+3}, 3, v{T0}
    v_lshl_add_u32 v{T0+2}, v{T0+3}, 3, v{T0+2}
    v_lshrrev_b32 v{T0+3}, 2, v{T0}
    v_lshl_add_u32 v{T0+3}, v{T0+1}, 3, v{T0+3}
    v_lshl_add_u32 v{vBb[0]}, v{T0+3}, 7, v{T0+2}
    v_xor_b32 v{vBb[1]}, 32, v{vBb[0]}
    v_mov_b32 v{vA[0]}, v{vAb[0]}
    v_mov_b32 v{vA[1]}, v{vAb[1]}
    v_mov_b32 v{vB[0]}, v{vBb[0]}
    v_mov_b32 v{vB[1]}, v{vBb[1]}
    ''')
    for i in range(MB * NB * 4):
        k(f'v_mov_b32 v{ACC+i}, 0')
    def a_off(u): return u * BM * 128
    def b_off(u, sub): return 32768 + (u * NBS + sub) * 8192
    def reads(s, st):
        u, sb = s >> 1, s & 1
        out = []
        for mb in range(MB):
            out.append(f'ds_read_b128 v[{fA(st,mb)}:{fA(st,mb)+3}], v{vA[sb]} offset:{a_off(u)+mb*2048}')
        for nb in range(NB):
            sub, j = nb >> 1, nb & 1
            for h in range(2):
                out.append(f'ds_read_b64_tr_b16 v[{fB(st,nb)+2*h}:{fB(st,nb)+2*h+1}], v{vB[j]} offset:{b_off(u,sub)+(32*sb+4*h)*128}')
        return out
    def mfmas(st):
        out = []
        for mb in range(MB):
            for nb in range(NB):
                a = ACC + (mb * NB + nb) * 4
                out.append(f'v_mfma_f32_16x16x32_bf16 v[{a}:{a+3}], v[{fB(st,nb)}:{fB(st,nb)+3}], v[{fA(st,mb)}:{fA(st,mb)+3}], v[{a}:{a+3}]')
        return out
    def interleave(mf, rd, pre=()):
        out = list(pre)
        n = len(mf)
        ri = 0
        for i, m in enumerate(mf):
            out.append(m)
            want = min(len(rd), ((i + 1) * len(rd) * 4 + 3 * n - 1) // (3 * n))
            while ri < want:
                out.append(rd[ri]); ri += 1
        out += rd[ri:]
        return out
    k(f'''
    s_mov_b32 s39, 0
    s_mov_b32 s35, 0
    s_barrier
    ''')
    if 'stamp' in GX: k('s_memtime s[62:63]\ns_waitcnt lgkmcnt(0)')
    for r in reads(0, 0): k(r)
    def stage_body(last):
        for s in range(S):
            k('s_waitcnt lgkmcnt(0)')
            if s < S - 1:
                for x in interleave(mfmas(s & 1), reads(s + 1, (s + 1) & 1)): k(x)
            elif not last:
                k(f'''
                s_barrier
                s_add_u32 s39, s39, {STG}
                s_cmp_ge_u32 s39, {3*STG}
                s_cselect_b32 s39, 0, s39
                v_add_u32 v{vA[0]}, s39, v{vAb[0]}
                v_add_u32 v{vA[1]}, s39, v{vAb[1]}
                v_add_u32 v{vB[0]}, s39, v{vBb[0]}
                v_add_u32 v{vB[1]}, s39, v{vBb[1]}
                ''')
                for x in interleave(mfmas(s & 1), reads(0, 0)): k(x)
            else:
                epi_pre()
                for x in mfmas(s & 1): k(x)
    E0 = F0
    vO = T0
    vW = T0 + 8
    def epi_pre():
        ncols = 64 * (NBS if epi == 'q' else 1)
        k(f'''
        v_and_b32 v{T0+1}, 15, v0
        v_lshrrev_b32 v{T0+2}, 4, v0
        s_mul_i32 s46, s36, {BM//2}
        s_add_u32 s46, s46, s32
        v_add_u32 v{T0+1}, s46, v{T0+1}
        s_mov_b32 s46, {ldo}
        v_mul_lo_u32 v{T0+1}, v{T0+1}, s46
        s_mul_i32 s46, s33, {ncols*2}
        s_lshl_b32 s47, s37, 6
        s_add_u32 s46, s46, s47
        v_lshl_add_u32 v{T0+2}, v{T0+2}, 3, s46
        v_add_u32 v{vO}, v{T0+1}, v{T0+2}
        ''')
        k(f'''
        v_and_b32 v{T0+1}, 15, v0
        s_mul_i32 s46, s36, {BM//2}
        v_add_u32 v{T0+1}, s46, v{T0+1}
        v_mul_u32_u24 v{T0+1}, {OST}, v{T0+1}
        v_lshrrev_b32 v{T0+3}, 4, v0
        s_lshl_b32 s47, s37, 6
        s_add_u32 s47, s47, {OBASE}
        v_lshl_add_u32 v{T0+3}, v{T0+3}, 3, s47
        v_add_u32 v{vW}, v{T0+1}, v{T0+3}
        ''')
        if epi == 'res':
            k(f'v_lshlrev_b32 v{T0+3}, 1, v{T0+2}')
            k(f's_mov_b32 s46, {cfg["gidx"]*4096}')
            for j in range(NB):
                k(f'buffer_load_dwordx4 v[{E0+j*4}:{E0+j*4+3}], v{T0+3}, s[28:31], s46 offen offset:{j*64}')
            for mb in range(MB):
                k(f's_mov_b32 s46, {mb*16*ldo}')
                for j in range(NB):
                    r = E0 + NB * 4 + (mb * NB + j) * 2
                    k(f'buffer_load_dwordx2 v[{r}:{r+1}], v{vO}, s[24:27], s46 offen offset:{j*32}')
    k(f'{L("cloop")}:')
    stage_body(False)
    k(f'''
    s_add_u32 s35, s35, 1
    s_cmp_lt_u32 s35, {NS-1}
    s_cbranch_scc1 {L("cloop")}
    ''')
    stage_body(True)
    if 'stamp' in GX: k('s_nop 15\ns_memtime s[64:65]\ns_waitcnt lgkmcnt(0)')
    t = T0 + 4
    if epi == 'q':
        for mb in range(MB):
            k(f's_mov_b32 s46, {mb*16*ldo}')
            for nb in range(NB):
                a = ACC + (mb * NB + nb) * 4
                sub, j = nb >> 1, nb & 1
                k(f'''
                v_cvt_pk_bf16_f32 v{a}, v{a}, v{a+1}
                v_cvt_pk_bf16_f32 v{a+1}, v{a+2}, v{a+3}
                ds_write_b64 v{vW}, v[{a}:{a+1}] offset:{mb*16*OST+sub*128+j*32}
                ''')
    elif epi == 'gu':
        k(f's_mov_b32 s47, 0x{LOG2E:x}')
        for mb in range(MB):
            k(f's_mov_b32 s46, {mb*16*ldo}')
            for j in range(2):
                g = ACC + (mb * NB + j) * 4
                u = ACC + (mb * NB + 2 + j) * 4
                for e in range(4):
                    rnd(k, g + e, g + e)
                    k(f'''
                    v_mul_f32 v{t}, s47, v{g+e}
                    v_exp_f32 v{t}, -v{t}
                    v_add_f32 v{t}, 1.0, v{t}
                    v_rcp_f32 v{t+1}, v{t}
                    v_mul_f32 v{t+2}, v{g+e}, v{t+1}
                    v_fma_f32 v{t+3}, -v{t+2}, v{t}, v{g+e}
                    v_fma_f32 v{t+2}, v{t+3}, v{t+1}, v{t+2}
                    ''')
                    rnd(k, t + 2, t + 2)
                    rnd(k, u + e, u + e)
                    k(f'v_mul_f32 v{g+e}, v{t+2}, v{u+e}')
                k(f'''
                v_cvt_pk_bf16_f32 v{g}, v{g}, v{g+1}
                v_cvt_pk_bf16_f32 v{g+1}, v{g+2}, v{g+3}
                ds_write_b64 v{vW}, v[{g}:{g+1}] offset:{mb*16*OST+j*32}
                ''')
    else:
        k('s_mov_b32 s47, 0xffff0000')
        k('s_waitcnt vmcnt(0)')
        for mb in range(MB):
            k(f's_mov_b32 s46, {mb*16*ldo}')
            for j in range(NB):
                a = ACC + (mb * NB + j) * 4
                r = E0 + NB * 4 + (mb * NB + j) * 2
                for e in range(4):
                    rnd(k, a + e, a + e)
                    k(f'v_mul_f32 v{a+e}, v{a+e}, v{E0+j*4+e}')
                    rnd(k, a + e, a + e)
                    if e & 1:
                        k(f'v_and_b32 v{t}, s47, v{r+(e>>1)}')
                    else:
                        k(f'v_lshlrev_b32 v{t}, 16, v{r+(e>>1)}')
                    k(f'v_add_f32 v{a+e}, v{a+e}, v{t}')
                k(f'''
                v_cvt_pk_bf16_f32 v{a}, v{a}, v{a+1}
                v_cvt_pk_bf16_f32 v{a+1}, v{a+2}, v{a+3}
                ds_write_b64 v{vW}, v[{a}:{a+1}] offset:{mb*16*OST+j*32}
                ''')
    def coop_store(wreg):
        LPR = ROWB // 16; RPI = 64 // LPR; nins = BM // 8 // RPI
        lsh = LPR.bit_length() - 1
        ncolb = 256 if epi == 'q' else 128
        k(f'''
        v_lshrrev_b32 v4, {lsh}, v0
        v_and_b32 v5, {LPR-1}, v0
        s_mul_i32 s46, s{wreg}, {BM//8}
        v_add_u32 v4, s46, v4
        v_mul_u32_u24 v6, {OST}, v4
        v_lshl_add_u32 v6, v5, 4, v6
        v_add_u32 v6, {OBASE}, v6
        v_add_u32 v4, s32, v4
        s_mov_b32 s46, {ldo}
        v_mul_lo_u32 v4, v4, s46
        s_mul_i32 s46, s33, {ncolb}
        v_lshl_add_u32 v5, v5, 4, s46
        v_add_u32 v4, v4, v5
        ''')
        for i in range(nins):
            k(f'ds_read_b128 v[{8+4*i}:{11+4*i}], v6 offset:{i*RPI*OST}')
        for i in range(nins):
            k(f's_waitcnt lgkmcnt({nins-1-i})')
            k(f's_mov_b32 s46, {i*RPI*ldo}')
            k(f'buffer_store_dwordx4 v[{8+4*i}:{11+4*i}], v4, s[20:23], s46 offen')
    k('s_waitcnt lgkmcnt(0)\ns_barrier')
    coop_store(34)
    if 'stamp' in GX:
        k(f'''
        s_waitcnt vmcnt(0)
        s_memtime s[66:67]
        s_waitcnt lgkmcnt(0)
        s_sub_u32 s62, s62, s60
        s_sub_u32 s64, s64, s60
        s_sub_u32 s66, s66, s60
        s_mov_b32 s58, 256
        s_mov_b32 s59, 0x00020000
        v_mov_b32 v4, s62
        v_mov_b32 v5, s64
        v_mov_b32 v6, s66
        v_mov_b32 v7, 0
        s_lshl_b32 s64, s34, 4
        v_mov_b32 v1, s64
        s_cmp_lg_u32 s2, 100
        s_cbranch_scc1 {L('end')}
        v_cmp_eq_u32 vcc, 0, v0
        s_and_saveexec_b64 s[68:69], vcc
        buffer_store_dwordx4 v[4:7], v1, s[56:59], 0 offen
        ''')
    k('s_endpgm')
    nv_compute = T0 + 10
    k(f'{L("loader")}:')
    k(f'''
    s_sub_u32 s34, s34, 4
    s_and_b32 s36, s34, 1
    s_lshr_b32 s37, s34, 1
    v_lshrrev_b32 v1, 3, v0
    v_and_b32 v2, 7, v0
    v_lshrrev_b32 v3, 4, v0
    ''')
    if U == 1:
        k('s_lshl_b32 s46, s34, 6')
        k('s_mov_b32 s47, 0')
    else:
        k('s_lshl_b32 s46, s36, 6')
        k('s_lshl_b32 s47, s37, 7')
    k(f'''
    s_add_u32 s46, s46, s32
    s_mov_b32 s48, {lda}
    ''')
    for a in range(8):
        k(f'''
        v_add_u32 v4, {(4*a)&7}, v3
        v_and_b32 v4, 7, v4
        v_xor_b32 v4, v2, v4
        v_lshlrev_b32 v4, 4, v4
        v_add_u32 v5, s46, v1
        v_add_u32 v5, {8*a}, v5
        v_mul_lo_u32 v5, v5, s48
        v_add3_u32 v{8+a}, v5, v4, s47
        ''')
    if U == 1:
        k(f'''
        s_cmp_eq_u32 s37, 0
        s_cselect_b32 s12, s12, s16
        s_cselect_b32 s13, s13, s17
        s_lshl_b32 s46, s36, 5
        ''')
        if epi == 'q':
            k(f'''
            s_mul_i32 s47, s33, 256
            s_lshl_b32 s49, s37, 7
            s_add_u32 s47, s47, s49
            ''')
        else:
            k('s_mul_i32 s47, s33, 128')
    else:
        k(f'''
        s_lshl_b32 s46, s36, 5
        s_lshl_b32 s49, s37, 6
        s_add_u32 s46, s46, s49
        s_mul_i32 s47, s33, 128
        ''')
    k(f's_mov_b32 s48, {ldb}')
    for b in range(4):
        k(f'''
        v_and_b32 v4, 1, v3
        v_or_b32 v4, {(b&1)<<1}, v4
        v_lshrrev_b32 v5, 1, v2
        v_xor_b32 v4, v5, v4
        v_lshlrev_b32 v4, 5, v4
        v_and_b32 v5, 1, v2
        v_lshl_add_u32 v4, v5, 4, v4
        v_add_u32 v5, s46, v1
        v_add_u32 v5, {8*b}, v5
        v_mul_lo_u32 v5, v5, s48
        v_add3_u32 v{16+b}, v5, v4, s47
        ''')
    k(f'''
    s_lshl_b32 s50, s34, 13
    s_lshl_b32 s51, s34, 12
    s_add_u32 s51, s51, 32768
    s_mov_b32 s52, 0
    s_mov_b32 s53, 0
    s_mov_b32 s39, 0
    ''')
    def issue():
        for a in range(8):
            k(f'''
            s_add_u32 s54, s39, s50
            s_add_u32 m0, s54, {a*1024}
            s_nop 0
            buffer_load_dwordx4 v{8+a}, s[8:11], s52 offen lds
            ''')
        for b in range(4):
            k(f'''
            s_add_u32 s54, s39, s51
            s_add_u32 m0, s54, {b*1024}
            s_nop 0
            buffer_load_dwordx4 v{16+b}, s[12:15], s53 offen lds
            ''')
        k(f'''
        s_add_u32 s52, s52, {128*U}
        s_add_u32 s53, s53, {64*U*ldb}
        s_add_u32 s39, s39, {STG}
        s_cmp_ge_u32 s39, {3*STG}
        s_cselect_b32 s39, 0, s39
        ''')
    issue(); issue(); issue()
    k(f'''
    s_waitcnt vmcnt(24)
    s_barrier
    s_mov_b32 s35, 0
    {L("lloop")}:
    s_waitcnt vmcnt(12)
    s_barrier
    ''')
    issue()
    k(f'''
    s_add_u32 s35, s35, 1
    s_cmp_lt_u32 s35, {NS-3}
    s_cbranch_scc1 {L("lloop")}
    s_waitcnt vmcnt(12)
    s_barrier
    s_waitcnt vmcnt(0)
    s_barrier
    ''')
    if cfg.get('pfkv'):
        k(f'''
        s_load_dwordx4 s[56:59], s[0:1], {KA['k']}
        s_and_b32 s46, s34, 1
        s_lshl_b32 s46, s46, 12
        s_lshl_b32 s47, s2, 13
        s_add_u32 s46, s46, s47
        v_lshlrev_b32 v4, 6, v0
        v_add_u32 v4, s46, v4
        s_waitcnt lgkmcnt(0)
        s_cmp_ge_u32 s34, 2
        s_cselect_b32 s60, s58, s56
        s_cselect_b32 s61, s59, s57
        s_mov_b32 s62, 0x200000
        s_mov_b32 s63, 0x00020000
        buffer_load_dword v5, v4, s[60:63], 0 offen
        ''')
    k(f'''
    s_add_u32 s34, s34, 4
    s_barrier
    ''')
    coop_store(34)
    k(f'''
    {L("end")}:
    s_endpgm
    ''')
    return k, dict(vgpr=max(nv_compute, 48), sgpr=72, grid=nwg, block=512, lds=3 * STG)

def build(kernels, path):
    hdr = open('adaLN_cond__gqa_block_cached__swiglu_ffn__prompt.s.ref').read().split('; Override launch')[0]
    out = [hdr.rstrip('\n')]
    for k, m in kernels:
        out.append(f'; @launch kernel={k.name} grid=({m["grid"]},1,1) block=({m["block"]},1,1) lds={m["lds"]}')
    out.append('.amdgcn_target "amdgcn-amd-amdhsa--gfx950"')
    out.append('.text')
    seen = set()
    for k, m in kernels:
        if k.name in seen: continue
        seen.add(k.name)
        k.pad()
        out.append(f'.globl {k.name}\n.p2align 8\n.type {k.name},@function\n{k.name}:')
        out.append(k.text())
    out.append('.section .rodata,"a"')
    seen = set()
    for k, m in kernels:
        if k.name in seen: continue
        seen.add(k.name)
        v = (m['vgpr'] + 7) // 8 * 8
        out.append(f'''.p2align 6
.amdhsa_kernel {k.name}
  .amdhsa_next_free_vgpr {v}
  .amdhsa_next_free_sgpr {m['sgpr']}
  .amdhsa_accum_offset {(v+3)//4*4}
  .amdhsa_group_segment_fixed_size 0
  .amdhsa_kernarg_size 112
  .amdhsa_user_sgpr_count 2
  .amdhsa_user_sgpr_kernarg_segment_ptr 1
  .amdhsa_system_sgpr_workgroup_id_x 1
.end_amdhsa_kernel''')
    open(path, 'w').write('\n'.join(out) + '\n')

if __name__ == '__main__':
    from attn3 import gen_attn
    ks = []
    ks.append(gen_mod())
    ks.append(gen_ln('ln1_kernel', False, 0, 0, 1, WS_H1))
    ks.append(gen_attn())
    from gemmw import gen_gemmw
    from gemms import gen_gemms
    ks.append(gen_gemms('wo_kernel', dict(K=4096, lda=8192, Aoff=WS_O, B=KA['wo'])))
    ks.append(gen_ln('ln2_kernel', False, 0, 3, 4, WS_H2, red=True))
    from gu2 import gen_gu2
    ks.append(gen_gu2())
    ks.append(gen_gemmw('down_kernel', dict(K=3584, lda=7168, Aoff=WS_GU, B=KA['wd'], gidx=5, out_is_out=True, res_from_ws=True, Roff=WS_X2)))
    import os
    build(ks, os.environ.get('OUT', 'adaLN_cond__gqa_block_cached__swiglu_ffn__prompt.s'))
```

```python
import sys, os
sys.path.insert(0, 'gen')
GX = os.environ.get('GX', '')
from asmlib import Kernel

KA = dict(x=0, k=8, v=16, wq=24, wo=32, bx=40, wg=48, wu=56, wd=64, c=72, wmod=80, out=88, dbg=96, ws=104)
WS_MOD = 0
WS_H1 = 0x100000
WS_X2 = 0x500000
WS_H2 = 0x900000
WS_Q = 0x1000000
WS_O = 0x2000000
WS_GU = 0x3000000
LOG2E = 0x3fb8aa3b
SCALE = 0x3db504f3

def srd(k, d, base_lo, base_hi, nbytes, off=0):
    if off:
        k(f's_add_u32 s{d}, s{base_lo}, 0x{off:x}')
        k(f's_addc_u32 s{d+1}, s{base_hi}, 0')
    else:
        k(f's_mov_b32 s{d}, s{base_lo}')
        k(f's_mov_b32 s{d+1}, s{base_hi}')
    k(f's_mov_b32 s{d+2}, 0x{nbytes:x}')
    k(f's_mov_b32 s{d+3}, 0x00020000')

def rnd(k, d, s):
    k(f'v_cvt_pk_bf16_f32 v{d}, 0, v{s}')

def gen_mod():
    k = Kernel('mod_kernel')
    k(f'''
    s_cmp_ge_u32 s2, 192
    s_cbranch_scc1 L_mod_end
    s_load_dwordx2 s[4:5], s[0:1], {KA['c']}
    s_load_dwordx2 s[6:7], s[0:1], {KA['wmod']}
    s_load_dwordx2 s[8:9], s[0:1], {KA['ws']}
    v_lshrrev_b32 v1, 2, v0
    v_and_b32 v2, 3, v0
    v_lshlrev_b32 v3, 1, v1
    s_mov_b32 s3, 12288
    v_mul_lo_u32 v4, v1, s3
    v_lshl_add_u32 v4, v2, 4, v4
    s_lshl_b32 s3, s2, 6
    v_add_u32 v4, s3, v4
    s_waitcnt lgkmcnt(0)
    ''')
    srd(k, 12, 4, 5, 2048)
    srd(k, 16, 6, 7, 1024 * 6144 * 2)
    srd(k, 20, 8, 9, 6144 * 4, WS_MOD)
    for p in range(16):
        k(f'buffer_load_ushort v{10+p}, v3, s[12:15], 0 offen offset:{p*128}')
    for p in range(16):
        k(f's_mov_b32 s24, {p*786432}')
        k(f'buffer_load_dwordx4 v[{32+4*p}:{35+4*p}], v4, s[16:19], s24 offen')
    k('s_waitcnt vmcnt(16)')
    k(f's_mov_b32 s25, 0x{LOG2E:x}')
    for p in range(16):
        x = 10 + p
        k(f'''
        v_lshlrev_b32 v{x}, 16, v{x}
        v_mul_f32 v5, s25, v{x}
        v_exp_f32 v5, -v5
        v_add_f32 v5, 1.0, v5
        v_rcp_f32 v6, v5
        v_mul_f32 v7, v{x}, v6
        v_fma_f32 v8, -v7, v5, v{x}
        v_fma_f32 v7, v8, v6, v7
        ''')
        rnd(k, x, 7)
    for i in range(8):
        k(f'v_mov_b32 v{100+i}, 0')
    k('s_mov_b32 s26, 0xffff0000')
    for p in range(16):
        k(f's_waitcnt vmcnt({15-p})')
        for i in range(4):
            d = 32 + 4 * p + i
            k(f'''
            v_lshlrev_b32 v5, 16, v{d}
            v_and_b32 v6, s26, v{d}
            v_fmac_f32 v{100+2*i}, v{10+p}, v5
            v_fmac_f32 v{101+2*i}, v{10+p}, v6
            ''')
    k(f'''
    v_lshlrev_b32 v5, 5, v0
    ds_write_b128 v5, v[100:103]
    ds_write_b128 v5, v[104:107] offset:16
    v_and_b32 v6, 31, v0
    v_lshrrev_b32 v7, 5, v0
    v_lshlrev_b32 v8, 10, v7
    v_lshl_add_u32 v8, v6, 2, v8
    s_waitcnt lgkmcnt(0)
    s_barrier
    ''')
    for r in range(8):
        k(f'ds_read_b32 v{10+r}, v8 offset:{r*128}')
    k('s_waitcnt lgkmcnt(0)')
    for r in range(1, 8):
        k(f'v_add_f32 v10, v10, v{10+r}')
    k(f'''
    v_lshlrev_b32 v8, 7, v7
    v_lshl_add_u32 v8, v6, 2, v8
    ds_write_b32 v8, v10 offset:8192
    v_lshlrev_b32 v9, 2, v6
    s_waitcnt lgkmcnt(0)
    s_barrier
    ''')
    for r in range(8):
        k(f'ds_read_b32 v{10+r}, v9 offset:{8192+r*128}')
    k('s_waitcnt lgkmcnt(0)')
    for r in range(1, 8):
        k(f'v_add_f32 v10, v10, v{10+r}')
    rnd(k, 10, 10)
    k(f'''
    s_lshl_b32 s3, s2, 7
    v_add_u32 v9, s3, v9
    v_cmp_gt_u32 vcc, 32, v0
    s_and_saveexec_b64 s[28:29], vcc
    s_cbranch_execz L_mod_end
    buffer_store_dword v10, v9, s[20:23], 0 offen
    L_mod_end:
    s_endpgm
    ''')
    return k, dict(vgpr=112, sgpr=32, grid=192, block=256, lds=16384)

def wave_sum(k, v, t):
    for off in (0x041F, 0x081F, 0x101F, 0x201F, 0x401F):
        k(f'''
        ds_swizzle_b32 v{t}, v{v} offset:0x{off:x}
        s_waitcnt lgkmcnt(0)
        v_add_f32 v{v}, v{v}, v{t}
        ''')
    k(f'''
    v_mov_b32 v{t}, v{v}
    v_permlane32_swap_b32 v{v}, v{t}
    v_add_f32 v{v}, v{v}, v{t}
    ''')

def gen_ln(name, src_from_ws, src_off, shift_idx, scale_idx, dst_off, pf=None, red=False):
    k = Kernel(name)
    k(f'''
    s_cmp_ge_u32 s2, 512
    s_cbranch_scc1 L_{name}_end
    s_load_dwordx2 s[4:5], s[0:1], {KA['ws'] if src_from_ws else KA['x']}
    s_load_dwordx2 s[8:9], s[0:1], {KA['ws']}
    s_load_dwordx2 s[28:29], s[0:1], {pf if pf is not None else KA['ws']}
    v_lshrrev_b32 v1, 6, v0
    v_and_b32 v2, 63, v0
    s_lshl_b32 s3, s2, 2
    v_add_u32 v1, s3, v1
    v_lshlrev_b32 v33, 12, v1
    v_lshl_add_u32 v33, v2, 6, v33
    v_lshlrev_b32 v1, 11, v1
    v_lshl_add_u32 v1, v2, 4, v1
    v_lshlrev_b32 v3, 5, v2
    s_waitcnt lgkmcnt(0)
    ''')
    srd(k, 12, 4, 5, 2048 * 2048, src_off)
    srd(k, 16, 8, 9, 6144 * 4, WS_MOD)
    srd(k, 20, 8, 9, 2048 * 2048, dst_off)
    k(f'''
    buffer_load_dwordx4 v[4:7], v1, s[12:15], 0 offen
    buffer_load_dwordx4 v[8:11], v1, s[12:15], 0 offen offset:1024
    s_mov_b32 s24, {shift_idx*4096}
    s_mov_b32 s25, {scale_idx*4096}
    buffer_load_dwordx4 v[48:51], v3, s[16:19], s24 offen
    buffer_load_dwordx4 v[52:55], v3, s[16:19], s24 offen offset:16
    buffer_load_dwordx4 v[56:59], v3, s[16:19], s24 offen offset:2048
    buffer_load_dwordx4 v[60:63], v3, s[16:19], s24 offen offset:2064
    buffer_load_dwordx4 v[64:67], v3, s[16:19], s25 offen
    buffer_load_dwordx4 v[68:71], v3, s[16:19], s25 offen offset:16
    buffer_load_dwordx4 v[72:75], v3, s[16:19], s25 offen offset:2048
    buffer_load_dwordx4 v[76:79], v3, s[16:19], s25 offen offset:2064
    s_mov_b32 s26, 0xffff0000
    ''')
    if red:
        srd(k, 36, 8, 9, 2 * 2048 * 4096, 0x4000000)
        srd(k, 40, 8, 9, 2048 * 2048, WS_X2)
        k(f'''
        v_lshlrev_b32 v34, 1, v1
        s_mov_b32 s27, 0x800000
        s_mov_b32 s30, {2*4096}
        buffer_load_dwordx4 v[80:83], v34, s[36:39], 0 offen
        buffer_load_dwordx4 v[84:87], v34, s[36:39], 0 offen offset:16
        buffer_load_dwordx4 v[88:91], v34, s[36:39], 0 offen offset:2048
        buffer_load_dwordx4 v[92:95], v34, s[36:39], 0 offen offset:2064
        buffer_load_dwordx4 v[96:99], v34, s[36:39], s27 offen
        buffer_load_dwordx4 v[100:103], v34, s[36:39], s27 offen offset:16
        buffer_load_dwordx4 v[104:107], v34, s[36:39], s27 offen offset:2048
        buffer_load_dwordx4 v[108:111], v34, s[36:39], s27 offen offset:2064
        buffer_load_dwordx4 v[112:115], v3, s[16:19], s30 offen
        buffer_load_dwordx4 v[116:119], v3, s[16:19], s30 offen offset:16
        buffer_load_dwordx4 v[120:123], v3, s[16:19], s30 offen offset:2048
        buffer_load_dwordx4 v[124:127], v3, s[16:19], s30 offen offset:2064
        s_waitcnt vmcnt(0)
        ''')
    else:
        k('s_waitcnt vmcnt(8)')
    for i in range(8):
        k(f'v_lshlrev_b32 v{16+2*i}, 16, v{4+i}')
        k(f'v_and_b32 v{17+2*i}, s26, v{4+i}')
    if red:
        for i in range(16):
            k(f'v_add_f32 v{80+i}, v{80+i}, v{96+i}')
        for i in range(16): rnd(k, 80 + i, 80 + i)
        for i in range(16): k(f'v_mul_f32 v{80+i}, v{80+i}, v{112+i}')
        for i in range(16): rnd(k, 80 + i, 80 + i)
        for i in range(16): k(f'v_add_f32 v{16+i}, v{16+i}, v{80+i}')
        for i in range(16): rnd(k, 16 + i, 16 + i)
        for i in range(8):
            k(f'v_cvt_pk_bf16_f32 v{80+i}, v{16+2*i}, v{17+2*i}')
        k('''
        buffer_store_dwordx4 v[80:83], v1, s[40:43], 0 offen
        buffer_store_dwordx4 v[84:87], v1, s[40:43], 0 offen offset:1024
        ''')
    k('v_add_f32 v12, v16, v17')
    for i in range(2, 16):
        k(f'v_add_f32 v12, v12, v{16+i}')
    wave_sum(k, 12, 13)
    k('v_mul_f32 v12, 0x3a800000, v12')
    k('v_mov_b32 v14, 0')
    for i in range(16):
        k(f'v_sub_f32 v13, v{16+i}, v12')
        k(f'v_fmac_f32 v14, v13, v13')
    wave_sum(k, 14, 13)
    k('v_mul_f32 v14, 0x3a800000, v14')
    rnd(k, 12, 12)
    rnd(k, 14, 14)
    k('v_add_f32 v14, 0x3727c5ac, v14')
    rnd(k, 14, 14)
    k('v_sqrt_f32 v14, v14')
    rnd(k, 14, 14)
    k('v_rcp_f32 v15, v14')
    k('s_waitcnt vmcnt(0)')
    for i in range(16):
        x = 16 + i
        k(f'v_sub_f32 v{x}, v{x}, v12')
        rnd(k, x, x)
        k(f'''
        v_mul_f32 v13, v{x}, v15
        v_fma_f32 v32, -v13, v14, v{x}
        v_fma_f32 v13, v32, v15, v13
        ''')
        rnd(k, 13, 13)
        k(f'v_add_f32 v32, 1.0, v{64+i}')
        rnd(k, 32, 32)
        k(f'v_mul_f32 v13, v13, v32')
        rnd(k, 13, 13)
        k(f'v_add_f32 v{x}, v13, v{48+i}')
    for i in range(8):
        k(f'v_cvt_pk_bf16_f32 v{4+i}, v{16+2*i}, v{17+2*i}')
    k(f'''
    buffer_store_dwordx4 v[4:7], v1, s[20:23], 0 offen
    buffer_store_dwordx4 v[8:11], v1, s[20:23], 0 offen offset:1024
    ''')
    if pf is not None:
        srd(k, 24, 28, 29, 0x800000)
        k('buffer_load_dword v34, v33, s[24:27], 0 offen')
    k(f'''
    L_{name}_end:
    s_endpgm
    ''')
    return k, dict(vgpr=128 if red else 80, sgpr=48, grid=512, block=256, lds=0)

STG = 49152
def gen_gemm(name, cfg):
    BM, NBS, U, K = cfg['BM'], cfg['NBS'], cfg['U'], cfg['K']
    MB = BM // 32; NB = 2 * NBS; S = 2 * U
    NS = K // (64 * U)
    lda = cfg['lda']; ldb = cfg['ldb']; ldo = cfg['ldo']
    MT, NT = cfg['MT'], cfg['NT']
    nwg = MT * NT
    epi = cfg['epi']
    ROWB = 256 if epi == 'q' else 128
    OST = ROWB + 16
    last_slot = (NS - 1) % 3
    OBASE = STG if last_slot != 1 else 2 * STG
    k = Kernel(name)
    L = lambda s: f'L_{name}_{s}'
    k(f'''
    s_cmp_ge_u32 s2, {nwg}
    s_cbranch_scc1 {L('end')}
    s_load_dwordx2 s[4:5], s[0:1], {KA['ws']}
    s_load_dwordx2 s[6:7], s[0:1], {cfg['B'][0]}
    s_load_dwordx2 s[40:41], s[0:1], {cfg['B'][-1]}
    s_load_dwordx2 s[42:43], s[0:1], {KA['x']}
    s_load_dwordx2 s[44:45], s[0:1], {KA['out']}
    v_lshrrev_b32 v1, 6, v0
    v_and_b32 v0, 63, v0
    s_nop 0
    v_readfirstlane_b32 s34, v1
    s_and_b32 s3, s2, 7
    s_lshr_b32 s35, s2, 3
    ''')
    gx = MT // 4
    gsh = gx.bit_length() - 1
    k(f'''
    s_and_b32 s32, s3, {gx-1}
    s_lshl_b32 s32, s32, 2
    s_and_b32 s36, s35, 3
    s_add_u32 s32, s32, s36
    s_lshr_b32 s33, s3, {gsh}
    s_mul_i32 s33, s33, {NT//(8//gx)}
    s_lshr_b32 s36, s35, 2
    s_add_u32 s33, s33, s36
    s_mul_i32 s32, s32, {BM}
    s_waitcnt lgkmcnt(0)
    ''')
    if 'stamp' in GX:
        k('''
        s_memtime s[60:61]
        s_load_dwordx2 s[56:57], s[0:1], 96
        s_waitcnt lgkmcnt(0)
        ''')
    srd(k, 8, 4, 5, 2048 * lda, cfg['Aoff'])
    srd(k, 12, 6, 7, K * ldb)
    srd(k, 16, 40, 41, K * ldb)
    if epi == 'q':
        srd(k, 20, 4, 5, 2048 * ldo, cfg['Ooff'])
    elif epi == 'gu':
        srd(k, 20, 4, 5, 2048 * ldo, cfg['Ooff'])
    else:
        if cfg['out_is_out']:
            srd(k, 20, 44, 45, 2048 * ldo)
        else:
            srd(k, 20, 4, 5, 2048 * ldo, cfg['Ooff'])
        if cfg['res_from_ws']:
            srd(k, 24, 4, 5, 2048 * 2048, cfg['Roff'])
        else:
            srd(k, 24, 42, 43, 2048 * 2048)
        srd(k, 28, 4, 5, 6144 * 4, WS_MOD)
    k(f'''
    s_cmp_ge_u32 s34, 4
    s_cbranch_scc1 {L('loader')}
    ''')
    ACC = 4
    F0 = ACC + MB * NB * 4
    FS = (MB + NB) * 4
    def fA(st, mb): return F0 + st * FS + mb * 4
    def fB(st, nb): return F0 + st * FS + MB * 4 + nb * 4
    AD = F0 + 2 * FS
    vA = [AD, AD + 1]; vB = [AD + 2, AD + 3]; vAb = [AD + 4, AD + 5]; vBb = [AD + 6, AD + 7]
    T0 = AD + 8
    k(f'''
    s_and_b32 s36, s34, 1
    s_lshr_b32 s37, s34, 1
    v_and_b32 v{T0}, 15, v0
    v_lshrrev_b32 v{T0+1}, 4, v0
    v_lshrrev_b32 v{T0+2}, 1, v{T0}
    v_xor_b32 v{T0+2}, v{T0+1}, v{T0+2}
    v_lshlrev_b32 v{T0+2}, 4, v{T0+2}
    v_lshl_add_u32 v{T0+2}, v{T0}, 7, v{T0+2}
    s_mul_i32 s38, s36, {(BM//2)*128}
    v_add_u32 v{vAb[0]}, s38, v{T0+2}
    v_xor_b32 v{vAb[1]}, 64, v{vAb[0]}
    ''')
    k(f'''
    v_lshrrev_b32 v{T0+2}, 3, v{T0}
    v_and_b32 v{T0+3}, 1, v{T0+1}
    v_lshl_or_b32 v{T0+2}, v{T0+3}, 1, v{T0+2}
    s_lshl_b32 s38, s37, 1
    v_xor_b32 v{T0+2}, s38, v{T0+2}
    v_lshlrev_b32 v{T0+2}, 5, v{T0+2}
    v_and_b32 v{T0+3}, 3, v{T0}
    v_lshl_add_u32 v{T0+2}, v{T0+3}, 3, v{T0+2}
    v_lshrrev_b32 v{T0+3}, 2, v{T0}
    v_lshl_add_u32 v{T0+3}, v{T0+1}, 3, v{T0+3}
    v_lshl_add_u32 v{vBb[0]}, v{T0+3}, 7, v{T0+2}
    v_xor_b32 v{vBb[1]}, 32, v{vBb[0]}
    v_mov_b32 v{vA[0]}, v{vAb[0]}
    v_mov_b32 v{vA[1]}, v{vAb[1]}
    v_mov_b32 v{vB[0]}, v{vBb[0]}
    v_mov_b32 v{vB[1]}, v{vBb[1]}
    ''')
    for i in range(MB * NB * 4):
        k(f'v_mov_b32 v{ACC+i}, 0')
    def a_off(u): return u * BM * 128
    def b_off(u, sub): return 32768 + (u * NBS + sub) * 8192
    def reads(s, st):
        u, sb = s >> 1, s & 1
        out = []
        for mb in range(MB):
            out.append(f'ds_read_b128 v[{fA(st,mb)}:{fA(st,mb)+3}], v{vA[sb]} offset:{a_off(u)+mb*2048}')
        for nb in range(NB):
            sub, j = nb >> 1, nb & 1
            for h in range(2):
                out.append(f'ds_read_b64_tr_b16 v[{fB(st,nb)+2*h}:{fB(st,nb)+2*h+1}], v{vB[j]} offset:{b_off(u,sub)+(32*sb+4*h)*128}')
        return out
    def mfmas(st):
        out = []
        for mb in range(MB):
            for nb in range(NB):
                a = ACC + (mb * NB + nb) * 4
                out.append(f'v_mfma_f32_16x16x32_bf16 v[{a}:{a+3}], v[{fB(st,nb)}:{fB(st,nb)+3}], v[{fA(st,mb)}:{fA(st,mb)+3}], v[{a}:{a+3}]')
        return out
    def interleave(mf, rd, pre=()):
        out = list(pre)
        n = len(mf)
        ri = 0
        for i, m in enumerate(mf):
            out.append(m)
            want = min(len(rd), ((i + 1) * len(rd) * 4 + 3 * n - 1) // (3 * n))
            while ri < want:
                out.append(rd[ri]); ri += 1
        out += rd[ri:]
        return out
    k(f'''
    s_mov_b32 s39, 0
    s_mov_b32 s35, 0
    s_barrier
    ''')
    if 'stamp' in GX: k('s_memtime s[62:63]\ns_waitcnt lgkmcnt(0)')
    for r in reads(0, 0): k(r)
    def stage_body(last):
        for s in range(S):
            k('s_waitcnt lgkmcnt(0)')
            if s < S - 1:
                for x in interleave(mfmas(s & 1), reads(s + 1, (s + 1) & 1)): k(x)
            elif not last:
                k(f'''
                s_barrier
                s_add_u32 s39, s39, {STG}
                s_cmp_ge_u32 s39, {3*STG}
                s_cselect_b32 s39, 0, s39
                v_add_u32 v{vA[0]}, s39, v{vAb[0]}
                v_add_u32 v{vA[1]}, s39, v{vAb[1]}
                v_add_u32 v{vB[0]}, s39, v{vBb[0]}
                v_add_u32 v{vB[1]}, s39, v{vBb[1]}
                ''')
                for x in interleave(mfmas(s & 1), reads(0, 0)): k(x)
            else:
                epi_pre()
                for x in mfmas(s & 1): k(x)
    E0 = F0
    vO = T0
    vW = T0 + 8
    def epi_pre():
        ncols = 64 * (NBS if epi == 'q' else 1)
        k(f'''
        v_and_b32 v{T0+1}, 15, v0
        v_lshrrev_b32 v{T0+2}, 4, v0
        s_mul_i32 s46, s36, {BM//2}
        s_add_u32 s46, s46, s32
        v_add_u32 v{T0+1}, s46, v{T0+1}
        s_mov_b32 s46, {ldo}
        v_mul_lo_u32 v{T0+1}, v{T0+1}, s46
        s_mul_i32 s46, s33, {ncols*2}
        s_lshl_b32 s47, s37, 6
        s_add_u32 s46, s46, s47
        v_lshl_add_u32 v{T0+2}, v{T0+2}, 3, s46
        v_add_u32 v{vO}, v{T0+1}, v{T0+2}
        ''')
        k(f'''
        v_and_b32 v{T0+1}, 15, v0
        s_mul_i32 s46, s36, {BM//2}
        v_add_u32 v{T0+1}, s46, v{T0+1}
        v_mul_u32_u24 v{T0+1}, {OST}, v{T0+1}
        v_lshrrev_b32 v{T0+3}, 4, v0
        s_lshl_b32 s47, s37, 6
        s_add_u32 s47, s47, {OBASE}
        v_lshl_add_u32 v{T0+3}, v{T0+3}, 3, s47
        v_add_u32 v{vW}, v{T0+1}, v{T0+3}
        ''')
        if epi == 'res':
            k(f'v_lshlrev_b32 v{T0+3}, 1, v{T0+2}')
            k(f's_mov_b32 s46, {cfg["gidx"]*4096}')
            for j in range(NB):
                k(f'buffer_load_dwordx4 v[{E0+j*4}:{E0+j*4+3}], v{T0+3}, s[28:31], s46 offen offset:{j*64}')
            for mb in range(MB):
                k(f's_mov_b32 s46, {mb*16*ldo}')
                for j in range(NB):
                    r = E0 + NB * 4 + (mb * NB + j) * 2
                    k(f'buffer_load_dwordx2 v[{r}:{r+1}], v{vO}, s[24:27], s46 offen offset:{j*32}')
    k(f'{L("cloop")}:')
    stage_body(False)
    k(f'''
    s_add_u32 s35, s35, 1
    s_cmp_lt_u32 s35, {NS-1}
    s_cbranch_scc1 {L("cloop")}
    ''')
    stage_body(True)
    if 'stamp' in GX: k('s_nop 15\ns_memtime s[64:65]\ns_waitcnt lgkmcnt(0)')
    t = T0 + 4
    if epi == 'q':
        for mb in range(MB):
            k(f's_mov_b32 s46, {mb*16*ldo}')
            for nb in range(NB):
                a = ACC + (mb * NB + nb) * 4
                sub, j = nb >> 1, nb & 1
                k(f'''
                v_cvt_pk_bf16_f32 v{a}, v{a}, v{a+1}
                v_cvt_pk_bf16_f32 v{a+1}, v{a+2}, v{a+3}
                ds_write_b64 v{vW}, v[{a}:{a+1}] offset:{mb*16*OST+sub*128+j*32}
                ''')
    elif epi == 'gu':
        k(f's_mov_b32 s47, 0x{LOG2E:x}')
        for mb in range(MB):
            k(f's_mov_b32 s46, {mb*16*ldo}')
            for j in range(2):
                g = ACC + (mb * NB + j) * 4
                u = ACC + (mb * NB + 2 + j) * 4
                for e in range(4):
                    rnd(k, g + e, g + e)
                    k(f'''
                    v_mul_f32 v{t}, s47, v{g+e}
                    v_exp_f32 v{t}, -v{t}
                    v_add_f32 v{t}, 1.0, v{t}
                    v_rcp_f32 v{t+1}, v{t}
                    v_mul_f32 v{t+2}, v{g+e}, v{t+1}
                    v_fma_f32 v{t+3}, -v{t+2}, v{t}, v{g+e}
                    v_fma_f32 v{t+2}, v{t+3}, v{t+1}, v{t+2}
                    ''')
                    rnd(k, t + 2, t + 2)
                    rnd(k, u + e, u + e)
                    k(f'v_mul_f32 v{g+e}, v{t+2}, v{u+e}')
                k(f'''
                v_cvt_pk_bf16_f32 v{g}, v{g}, v{g+1}
                v_cvt_pk_bf16_f32 v{g+1}, v{g+2}, v{g+3}
                ds_write_b64 v{vW}, v[{g}:{g+1}] offset:{mb*16*OST+j*32}
                ''')
    else:
        k('s_mov_b32 s47, 0xffff0000')
        k('s_waitcnt vmcnt(0)')
        for mb in range(MB):
            k(f's_mov_b32 s46, {mb*16*ldo}')
            for j in range(NB):
                a = ACC + (mb * NB + j) * 4
                r = E0 + NB * 4 + (mb * NB + j) * 2
                for e in range(4):
                    rnd(k, a + e, a + e)
                    k(f'v_mul_f32 v{a+e}, v{a+e}, v{E0+j*4+e}')
                    rnd(k, a + e, a + e)
                    if e & 1:
                        k(f'v_and_b32 v{t}, s47, v{r+(e>>1)}')
                    else:
                        k(f'v_lshlrev_b32 v{t}, 16, v{r+(e>>1)}')
                    k(f'v_add_f32 v{a+e}, v{a+e}, v{t}')
                k(f'''
                v_cvt_pk_bf16_f32 v{a}, v{a}, v{a+1}
                v_cvt_pk_bf16_f32 v{a+1}, v{a+2}, v{a+3}
                ds_write_b64 v{vW}, v[{a}:{a+1}] offset:{mb*16*OST+j*32}
                ''')
    def coop_store(wreg):
        LPR = ROWB // 16; RPI = 64 // LPR; nins = BM // 8 // RPI
        lsh = LPR.bit_length() - 1
        ncolb = 256 if epi == 'q' else 128
        k(f'''
        v_lshrrev_b32 v4, {lsh}, v0
        v_and_b32 v5, {LPR-1}, v0
        s_mul_i32 s46, s{wreg}, {BM//8}
        v_add_u32 v4, s46, v4
        v_mul_u32_u24 v6, {OST}, v4
        v_lshl_add_u32 v6, v5, 4, v6
        v_add_u32 v6, {OBASE}, v6
        v_add_u32 v4, s32, v4
        s_mov_b32 s46, {ldo}
        v_mul_lo_u32 v4, v4, s46
        s_mul_i32 s46, s33, {ncolb}
        v_lshl_add_u32 v5, v5, 4, s46
        v_add_u32 v4, v4, v5
        ''')
        for i in range(nins):
            k(f'ds_read_b128 v[{8+4*i}:{11+4*i}], v6 offset:{i*RPI*OST}')
        for i in range(nins):
            k(f's_waitcnt lgkmcnt({nins-1-i})')
            k(f's_mov_b32 s46, {i*RPI*ldo}')
            k(f'buffer_store_dwordx4 v[{8+4*i}:{11+4*i}], v4, s[20:23], s46 offen')
    k('s_waitcnt lgkmcnt(0)\ns_barrier')
    coop_store(34)
    if 'stamp' in GX:
        k(f'''
        s_waitcnt vmcnt(0)
        s_memtime s[66:67]
        s_waitcnt lgkmcnt(0)
        s_sub_u32 s62, s62, s60
        s_sub_u32 s64, s64, s60
        s_sub_u32 s66, s66, s60
        s_mov_b32 s58, 256
        s_mov_b32 s59, 0x00020000
        v_mov_b32 v4, s62
        v_mov_b32 v5, s64
        v_mov_b32 v6, s66
        v_mov_b32 v7, 0
        s_lshl_b32 s64, s34, 4
        v_mov_b32 v1, s64
        s_cmp_lg_u32 s2, 100
        s_cbranch_scc1 {L('end')}
        v_cmp_eq_u32 vcc, 0, v0
        s_and_saveexec_b64 s[68:69], vcc
        buffer_store_dwordx4 v[4:7], v1, s[56:59], 0 offen
        ''')
    k('s_endpgm')
    nv_compute = T0 + 10
    k(f'{L("loader")}:')
    k(f'''
    s_sub_u32 s34, s34, 4
    s_and_b32 s36, s34, 1
    s_lshr_b32 s37, s34, 1
    v_lshrrev_b32 v1, 3, v0
    v_and_b32 v2, 7, v0
    v_lshrrev_b32 v3, 4, v0
    ''')
    if U == 1:
        k('s_lshl_b32 s46, s34, 6')
        k('s_mov_b32 s47, 0')
    else:
        k('s_lshl_b32 s46, s36, 6')
        k('s_lshl_b32 s47, s37, 7')
    k(f'''
    s_add_u32 s46, s46, s32
    s_mov_b32 s48, {lda}
    ''')
    for a in range(8):
        k(f'''
        v_add_u32 v4, {(4*a)&7}, v3
        v_and_b32 v4, 7, v4
        v_xor_b32 v4, v2, v4
        v_lshlrev_b32 v4, 4, v4
        v_add_u32 v5, s46, v1
        v_add_u32 v5, {8*a}, v5
        v_mul_lo_u32 v5, v5, s48
        v_add3_u32 v{8+a}, v5, v4, s47
        ''')
    if U == 1:
        k(f'''
        s_cmp_eq_u32 s37, 0
        s_cselect_b32 s12, s12, s16
        s_cselect_b32 s13, s13, s17
        s_lshl_b32 s46, s36, 5
        ''')
        if epi == 'q':
            k(f'''
            s_mul_i32 s47, s33, 256
            s_lshl_b32 s49, s37, 7
            s_add_u32 s47, s47, s49
            ''')
        else:
            k('s_mul_i32 s47, s33, 128')
    else:
        k(f'''
        s_lshl_b32 s46, s36, 5
        s_lshl_b32 s49, s37, 6
        s_add_u32 s46, s46, s49
        s_mul_i32 s47, s33, 128
        ''')
    k(f's_mov_b32 s48, {ldb}')
    for b in range(4):
        k(f'''
        v_and_b32 v4, 1, v3
        v_or_b32 v4, {(b&1)<<1}, v4
        v_lshrrev_b32 v5, 1, v2
        v_xor_b32 v4, v5, v4
        v_lshlrev_b32 v4, 5, v4
        v_and_b32 v5, 1, v2
        v_lshl_add_u32 v4, v5, 4, v4
        v_add_u32 v5, s46, v1
        v_add_u32 v5, {8*b}, v5
        v_mul_lo_u32 v5, v5, s48
        v_add3_u32 v{16+b}, v5, v4, s47
        ''')
    k(f'''
    s_lshl_b32 s50, s34, 13
    s_lshl_b32 s51, s34, 12
    s_add_u32 s51, s51, 32768
    s_mov_b32 s52, 0
    s_mov_b32 s53, 0
    s_mov_b32 s39, 0
    ''')
    def issue():
        for a in range(8):
            k(f'''
            s_add_u32 s54, s39, s50
            s_add_u32 m0, s54, {a*1024}
            s_nop 0
            buffer_load_dwordx4 v{8+a}, s[8:11], s52 offen lds
            ''')
        for b in range(4):
            k(f'''
            s_add_u32 s54, s39, s51
            s_add_u32 m0, s54, {b*1024}
            s_nop 0
            buffer_load_dwordx4 v{16+b}, s[12:15], s53 offen lds
            ''')
        k(f'''
        s_add_u32 s52, s52, {128*U}
        s_add_u32 s53, s53, {64*U*ldb}
        s_add_u32 s39, s39, {STG}
        s_cmp_ge_u32 s39, {3*STG}
        s_cselect_b32 s39, 0, s39
        ''')
    issue(); issue(); issue()
    k(f'''
    s_waitcnt vmcnt(24)
    s_barrier
    s_mov_b32 s35, 0
    {L("lloop")}:
    s_waitcnt vmcnt(12)
    s_barrier
    ''')
    issue()
    k(f'''
    s_add_u32 s35, s35, 1
    s_cmp_lt_u32 s35, {NS-3}
    s_cbranch_scc1 {L("lloop")}
    s_waitcnt vmcnt(12)
    s_barrier
    s_waitcnt vmcnt(0)
    s_barrier
    ''')
    if cfg.get('pfkv'):
        k(f'''
        s_load_dwordx4 s[56:59], s[0:1], {KA['k']}
        s_and_b32 s46, s34, 1
        s_lshl_b32 s46, s46, 12
        s_lshl_b32 s47, s2, 13
        s_add_u32 s46, s46, s47
        v_lshlrev_b32 v4, 6, v0
        v_add_u32 v4, s46, v4
        s_waitcnt lgkmcnt(0)
        s_cmp_ge_u32 s34, 2
        s_cselect_b32 s60, s58, s56
        s_cselect_b32 s61, s59, s57
        s_mov_b32 s62, 0x200000
        s_mov_b32 s63, 0x00020000
        buffer_load_dword v5, v4, s[60:63], 0 offen
        ''')
    k(f'''
    s_add_u32 s34, s34, 4
    s_barrier
    ''')
    coop_store(34)
    k(f'''
    {L("end")}:
    s_endpgm
    ''')
    return k, dict(vgpr=max(nv_compute, 48), sgpr=72, grid=nwg, block=512, lds=3 * STG)

def build(kernels, path):
    hdr = open('adaLN_cond__gqa_block_cached__swiglu_ffn__prompt.s.ref').read().split('; Override launch')[0]
    out = [hdr.rstrip('\n')]
    for k, m in kernels:
        out.append(f'; @launch kernel={k.name} grid=({m["grid"]},1,1) block=({m["block"]},1,1) lds={m["lds"]}')
    out.append('.amdgcn_target "amdgcn-amd-amdhsa--gfx950"')
    out.append('.text')
    seen = set()
    for k, m in kernels:
        if k.name in seen: continue
        seen.add(k.name)
        k.pad()
        out.append(f'.globl {k.name}\n.p2align 8\n.type {k.name},@function\n{k.name}:')
        out.append(k.text())
    out.append('.section .rodata,"a"')
    seen = set()
    for k, m in kernels:
        if k.name in seen: continue
        seen.add(k.name)
        v = (m['vgpr'] + 7) // 8 * 8
        out.append(f'''.p2align 6
.amdhsa_kernel {k.name}
  .amdhsa_next_free_vgpr {v}
  .amdhsa_next_free_sgpr {m['sgpr']}
  .amdhsa_accum_offset {(v+3)//4*4}
  .amdhsa_group_segment_fixed_size 0
  .amdhsa_kernarg_size 112
  .amdhsa_user_sgpr_count 2
  .amdhsa_user_sgpr_kernarg_segment_ptr 1
  .amdhsa_system_sgpr_workgroup_id_x 1
.end_amdhsa_kernel''')
    open(path, 'w').write('\n'.join(out) + '\n')

if __name__ == '__main__':
    from attn3 import gen_attn
    ks = []
    ks.append(gen_mod())
    ks.append(gen_ln('ln1_kernel', False, 0, 0, 1, WS_H1))
    ks.append(gen_attn())
    from gemmw import gen_gemmw
    from gemms import gen_gemms
    if 'nosplit' in GX:
        ks.append(gen_gemmw('wo_kernel', dict(K=4096, lda=8192, Aoff=WS_O, B=KA['wo'], Ooff=WS_X2, gidx=2, out_is_out=False, res_from_ws=False)))
        ks.append(gen_ln('ln2_kernel', True, WS_X2, 3, 4, WS_H2))
    else:
        ks.append(gen_gemms('wo_kernel', dict(K=4096, lda=8192, Aoff=WS_O, B=KA['wo'])))
        ks.append(gen_ln('ln2_kernel', False, 0, 3, 4, WS_H2, red=True))
    from gu2 import gen_gu2
    ks.append(gen_gu2())
    ks.append(gen_gemmw('down_kernel', dict(K=3584, lda=7168, Aoff=WS_GU, B=KA['wd'], gidx=5, out_is_out=True, res_from_ws=True, Roff=WS_X2)))
    import os
    build(ks, os.environ.get('OUT', 'adaLN_cond__gqa_block_cached__swiglu_ffn__prompt.s'))
```

```python
from asmlib import Kernel
from gen import *
import os
XF = os.environ.get('XF', '')

def gen_attn():
    name = 'attn_kernel'
    k = Kernel(name)
    L = lambda s: f'L_{name}_{s}'
    NT = 32
    KSL = 16384
    KB = 96 * 1024; VB = 32 * 1024
    def ksl(j): return ((j + 3) % 4) * KSL
    def vsl(j): return ((j + 1) % 4) * KSL
    STG = 49152
    Q = 4
    S = 36
    O = 68
    P = 132
    KF = 148
    VF = 164
    AK = 180
    AV = 188
    DM = 196
    M = 200; LS = 201; AL = 202; MN = 203; T = 204
    SUM = 212
    CL = 216; CS = 217
    CT = 218
    PFA = 219; PFD = 220; QA = 221
    PE = 224
    MS = 'msum' in XF
    LA = 224; ON = 240
    R8 = 'ring8' in XF
    def kfr(n): return (KF + (n & 3) * 4) if not (R8 and (n & 4)) else (224 + (n & 3) * 4)
    def vfr(n): return (VF + (n & 3) * 4) if not (R8 and (n & 4)) else (240 + (n & 3) * 4)
    NV = 256
    k(f'''
    s_cmp_ge_u32 s2, 256
    s_cbranch_scc1 {L('end')}
    s_load_dwordx2 s[4:5], s[0:1], {KA['ws']}
    s_load_dwordx2 s[6:7], s[0:1], {KA['k']}
    s_load_dwordx2 s[40:41], s[0:1], {KA['v']}
    s_load_dwordx2 s[24:25], s[0:1], {KA['wo']}
    s_load_dwordx4 s[28:31], s[0:1], {KA['wg']}
    s_load_dwordx2 s[26:27], s[0:1], {KA['wd']}
    s_load_dwordx2 s[88:89], s[0:1], {KA['wq']}
    v_lshrrev_b32 v{T}, 6, v0
    v_and_b32 v0, 63, v0
    s_nop 0
    v_readfirstlane_b32 s34, v{T}
    s_and_b32 s3, s2, 7
    s_lshr_b32 s35, s2, 3
    s_lshr_b32 s32, s3, 1
    s_lshl_b32 s33, s3, 2
    s_and_b32 s36, s35, 3
    s_add_u32 s33, s33, s36
    s_lshr_b32 s36, s35, 2
    s_lshr_b32 s49, s34, 2
    s_waitcnt lgkmcnt(0)
    ''')
    if 'stamp' in XF:
        k('''
        s_memtime s[60:61]
        s_memrealtime s[62:63]
        s_load_dwordx2 s[56:57], s[0:1], 96
        s_waitcnt lgkmcnt(0)
        s_mov_b32 s72, s60
        s_mov_b32 s70, 0
        s_mov_b32 s71, 0
        s_mov_b32 s77, 0
        ''')
    srd(k, 8, 4, 5, 2048 * 2048, WS_H1)
    srd(k, 84, 88, 89, 1024 * 8192)
    srd(k, 20, 4, 5, 2048 * 8192, WS_O)
    k(f'''
    s_lshr_b32 s37, s34, 1
    s_cmp_eq_u32 s37, 1
    s_cselect_b32 s24, s28, s24
    s_cselect_b32 s25, s29, s25
    s_cmp_eq_u32 s37, 2
    s_cselect_b32 s24, s30, s24
    s_cselect_b32 s25, s31, s25
    s_cmp_eq_u32 s37, 3
    s_cselect_b32 s24, s26, s24
    s_cselect_b32 s25, s27, s25
    s_cmp_eq_u32 s37, 0
    s_cselect_b32 s38, 0x800000, 0
    s_cmp_lg_u32 s37, 0
    s_cselect_b32 s18, 0x700000, s38
    s_mov_b32 s16, s24
    s_mov_b32 s17, s25
    s_mov_b32 s19, 0x00020000
    s_lshr_b32 s38, s18, 8
    s_mul_i32 s38, s38, s2
    s_and_b32 s37, s34, 1
    s_lshl_b32 s37, s37, 14
    s_add_u32 s38, s38, s37
    v_lshlrev_b32 v{PFA}, 6, v0
    v_add_u32 v{PFA}, s38, v{PFA}
    ''')
    k(f'''
    s_cmp_eq_u32 s49, 0
    s_cselect_b32 s6, s40, s6
    s_cselect_b32 s7, s41, s7
    s_lshl_b32 s37, s32, 19
    s_add_u32 s12, s6, s37
    s_addc_u32 s13, s7, 0
    s_mov_b32 s14, 0x80000
    s_mov_b32 s15, 0x00020000
    ''')
    k(f'''
    v_and_b32 v{T}, 31, v0
    v_lshrrev_b32 v{T+1}, 5, v0
    s_lshl_b32 s37, s36, 8
    s_lshl_b32 s38, s34, 5
    s_add_u32 s37, s37, s38
    v_add_u32 v{T+2}, s37, v{T}
    v_lshlrev_b32 v{T+2}, 13, v{T+2}
    s_lshl_b32 s38, s33, 8
    v_lshl_add_u32 v{T+3}, v{T+1}, 4, s38
    v_add_u32 v{T+2}, v{T+2}, v{T+3}
    ''')
    k(f'v_mov_b32 v{QA}, v{T+2}')
    k(f'''
    v_lshrrev_b32 v{T+3}, 4, v0
    v_and_b32 v{T+4}, 15, v0
    s_and_b32 s37, s34, 3
    s_lshl_b32 s37, s37, 4
    s_cmp_eq_u32 s49, 0
    s_cselect_b64 s[50:51], -1, 0
    ''')
    for j in range(4):
        k(f'''
        v_add_u32 v{T+5}, s37, v{T+3}
        v_add_u32 v{T+5}, {4*j}, v{T+5}
        v_and_b32 v{T+6}, 15, v{T+5}
        v_lshlrev_b32 v{T+7}, 2, v{T+3}
        v_cndmask_b32 v{T+6}, v{T+6}, v{T+7}, s[50:51]
        v_xor_b32 v{T+6}, v{T+4}, v{T+6}
        v_lshlrev_b32 v{T+6}, 4, v{T+6}
        v_lshl_add_u32 v{DM+j}, v{T+5}, 8, v{T+6}
        ''')
    k(f'''
    v_and_b32 v{T+3}, 1, v{T}
    v_xor_b32 v{T+3}, v{T+1}, v{T+3}
    v_lshlrev_b32 v{T+3}, 4, v{T+3}
    v_lshl_add_u32 v{T+3}, v{T}, 8, v{T+3}
    v_bfe_u32 v{T+4}, v{T}, 1, 3
    v_add_u32 v{T+3}, {KB}, v{T+3}
    ''')
    for s in range(8):
        k(f'''
        v_xor_b32 v{T+5}, {s}, v{T+4}
        v_lshl_add_u32 v{AK+s}, v{T+5}, 5, v{T+3}
        ''')
    k(f'''
    v_and_b32 v{T+3}, 15, v0
    v_lshrrev_b32 v{T+4}, 2, v{T+3}
    v_lshl_add_u32 v{T+5}, v{T+1}, 2, v{T+4}
    v_lshlrev_b32 v{T+5}, 8, v{T+5}
    v_bfe_u32 v{T+6}, v0, 4, 1
    v_lshl_add_u32 v{T+5}, v{T+6}, 5, v{T+5}
    v_and_b32 v{T+6}, 3, v{T+3}
    v_lshl_add_u32 v{T+5}, v{T+6}, 3, v{T+5}
    v_add_u32 v{T+5}, {VB}, v{T+5}
    ''')
    for db in range(4):
        k(f'''
        v_xor_b32 v{T+6}, {db}, v{T+4}
        v_lshl_add_u32 v{AV+db}, v{T+6}, 6, v{T+5}
        ''')
    for i in range(64):
        k(f'v_mov_b32 v{O+i}, 0')
    k(f'''
    v_mov_b32 v{M}, 0xff800000
    v_mov_b32 v{MN}, 0xff800000
    v_mov_b32 v{LS}, 0
    v_mov_b32 v{CL}, 0x{LOG2E:x}
    v_mov_b32 v{CS}, 0x{SCALE:x}
    v_mov_b32 v{CT}, 0x4b800000
    s_and_b32 s46, s34, 3
    s_lshl_b32 s46, s46, 12
    s_mov_b32 s54, {KB}
    s_cmp_eq_u32 s49, 0
    s_cselect_b32 s37, {VB}, s54
    s_add_u32 s46, s46, s37
    s_mov_b32 s47, 0
    s_lshl_b32 s53, s49, 15
    ''')
    def dma(tile):
        k(f'''
        s_xor_b32 s52, s53, {vsl(tile)}
        s_add_u32 s52, s52, s46
        ''')
        for j in range(4):
            k(f'''
            s_add_u32 m0, s52, {j*1024}
            s_nop 0
            buffer_load_dwordx4 v{DM+j}, s[12:15], s47 offen lds
            ''')
        k('s_add_u32 s47, s47, 16384')
    def kread(slot, n):
        kb, s = n >> 3, n & 7
        r = kfr(n)
        return [f'ds_read_b128 v[{r}:{r+3}], v{AK+s} offset:{ksl(slot) + kb*8192}']
    def qk(n):
        kb, s = n >> 3, n & 7
        r = kfr(n)
        d = S + kb * 16
        c = '0' if s == 0 else f'v[{d}:{d+15}]'
        return f'v_mfma_f32_32x32x16_bf16 v[{d}:{d+15}], v[{r}:{r+3}], v[{Q+4*s}:{Q+4*s+3}], {c}'
    def vread(slot, n):
        db, j = n >> 2, n & 3
        r = vfr(n)
        return [f'ds_read_b64_tr_b16 v[{r}:{r+1}], v{AV+db} offset:{vsl(slot) + (16*j)*256}',
                f'ds_read_b64_tr_b16 v[{r+2}:{r+3}], v{AV+db} offset:{vsl(slot) + (16*j+8)*256}']
    def pv(n):
        db, j = n >> 2, n & 3
        r = vfr(n)
        d = O + db * 16
        return f'v_mfma_f32_32x32x16_bf16 v[{d}:{d+15}], v[{r}:{r+3}], v[{P+4*j}:{P+4*j+3}], v[{d}:{d+15}]'
    def valuR():
        o = []
        for b in range(0, 32, 8):
            for i in range(b, b + 8): o.append(f'v_cvt_pk_bf16_f32 v{S+i}, 0, v{S+i}')
            for i in range(b, b + 8): o.append(f'v_mul_f32 v{S+i}, v{CS}, v{S+i}')
            for i in range(b, b + 8): o.append(f'v_cvt_pk_bf16_f32 v{S+i}, 0, v{S+i}')
        return o
    def exps():
        o = []
        for b in range(0, 32, 8):
            for i in range(b, b + 8): o.append(f'v_fma_f32 v{PE+i}, v{S+i}, v{CL}, -v{MN}')
            for i in range(b, b + 8): o.append(f'v_exp_f32 v{PE+i}, v{PE+i}')
            if b >= 8:
                for i in range(b - 8, b):
                    c = i & 3
                    if i < 4: o.append(f'v_mov_b32 v{SUM+c}, v{PE+i}')
                    else: o.append(f'v_add_f32 v{SUM+c}, v{SUM+c}, v{PE+i}')
        for i in range(24, 32):
            o.append(f'v_add_f32 v{SUM+(i&3)}, v{SUM+(i&3)}, v{PE+i}')
        o.append(f'v_add_f32 v{SUM}, v{SUM}, v{SUM+1}')
        o.append(f'v_add_f32 v{SUM+2}, v{SUM+2}, v{SUM+3}')
        o.append(f'v_add_f32 v{SUM}, v{SUM}, v{SUM+2}')
        return o
    def valu():
        o = exps()
        valu.cnt += 1
        lab = L('nr%d' % valu.cnt)
        o.append(f'v_cmp_nge_f32 vcc, v{CT}, v{SUM}')
        o.append(f's_cbranch_vccz {lab}')
        for st in range(3):
            for c in range(4):
                b = S + 8 * c
                if st == 0: o.append(f'v_max3_f32 v{T+c}, v{b}, v{b+1}, v{b+2}')
                else: o.append(f'v_max3_f32 v{T+c}, v{T+c}, v{b+1+2*st}, v{b+2+2*st}')
        o.append(f'v_max3_f32 v{T}, v{T}, v{S+7}, v{S+15}')
        o.append(f'v_max3_f32 v{T+2}, v{T+2}, v{S+23}, v{S+31}')
        o.append(f'v_max3_f32 v{T}, v{T}, v{T+1}, v{T+2}')
        o.append(f'v_max3_f32 v{T}, v{T}, v{T+3}, v{M}')
        o.append(f'v_mov_b32 v{T+1}, v{T}')
        o.append(f'v_permlane32_swap_b32 v{T}, v{T+1}')
        o.append(f'v_max_f32 v{T}, v{T}, v{T+1}')
        o.append(f'v_mul_f32 v{MN}, v{CL}, v{T}')
        o.append(f'v_fma_f32 v{T+1}, v{M}, v{CL}, -v{MN}')
        o.append(f'v_exp_f32 v{AL}, v{T+1}')
        o.append(f'v_mov_b32 v{M}, v{T}')
        o.append(f'v_mul_f32 v{LS}, v{AL}, v{LS}')
        for i in range(64): o.append(f'v_mul_f32 v{O+i}, v{AL}, v{O+i}')
        o += exps()
        o.append(f'{lab}:')
        for i in range(0, 32, 2): o.append(f'v_cvt_pk_bf16_f32 v{P+(i>>1)}, v{PE+i}, v{PE+i+1}')
        o.append(f'v_add_f32 v{LS}, v{LS}, v{SUM}')
        return o
    valu.cnt = 0
    def valuR_old():
        o = []
        for b in range(0, 32, 8):
            for i in range(b, b + 8): o.append(f'v_cvt_pk_bf16_f32 v{S+i}, 0, v{S+i}')
            for i in range(b, b + 8): o.append(f'v_mul_f32 v{S+i}, v{CS}, v{S+i}')
            for i in range(b, b + 8): o.append(f'v_cvt_pk_bf16_f32 v{S+i}, 0, v{S+i}')
        for st in range(3):
            for c in range(4):
                b = S + 8 * c
                if st == 0: o.append(f'v_max3_f32 v{T+c}, v{b}, v{b+1}, v{b+2}')
                else: o.append(f'v_max3_f32 v{T+c}, v{T+c}, v{b+1+2*st}, v{b+2+2*st}')
        o.append(f'v_max3_f32 v{T}, v{T}, v{S+7}, v{S+15}')
        o.append(f'v_max3_f32 v{T+2}, v{T+2}, v{S+23}, v{S+31}')
        o.append(f'v_max3_f32 v{T}, v{T}, v{T+1}, v{T+2}')
        o.append(f'v_max_f32 v{T}, v{T}, v{T+3}')
        return o
    def valu_old():
        o = []
        o.append(f'v_mov_b32 v{T+1}, v{T}')
        o.append(f'v_permlane32_swap_b32 v{T}, v{T+1}')
        o.append(f'v_max_f32 v{T}, v{T}, v{T+1}')
        o.append(f'v_sub_f32 v{T+1}, v{T}, v{M}')
        o.append(f'v_cmp_lt_f32 vcc, v{CT}, v{T+1}')
        valu_old.cnt += 1
        lab = L('nr%d' % valu_old.cnt)
        o.append(f's_cbranch_vccz {lab}')
        o.append(f'v_max_f32 v{T}, v{T}, v{M}')
        o.append(f'v_mul_f32 v{MN}, v{CL}, v{T}')
        o.append(f'v_fma_f32 v{T+1}, v{M}, v{CL}, -v{MN}')
        o.append(f'v_exp_f32 v{AL}, v{T+1}')
        o.append(f'v_mov_b32 v{M}, v{T}')
        o.append(f'v_mul_f32 v{LS}, v{AL}, v{LS}')
        for i in range(64): o.append(f'v_mul_f32 v{O+i}, v{AL}, v{O+i}')
        o.append(f'{lab}:')
        for b in range(0, 32, 8):
            for i in range(b, b + 8): o.append(f'v_fma_f32 v{S+i}, v{S+i}, v{CL}, -v{MN}')
            for i in range(b, b + 8): o.append(f'v_exp_f32 v{S+i}, v{S+i}')
            if b >= 8:
                for i in range(b - 8, b):
                    c = i & 3
                    if i < 4: o.append(f'v_mov_b32 v{SUM+c}, v{S+i}')
                    else: o.append(f'v_add_f32 v{SUM+c}, v{SUM+c}, v{S+i}')
                for i in range(b - 8, b, 2): o.append(f'v_cvt_pk_bf16_f32 v{P+(i>>1)}, v{S+i}, v{S+i+1}')
        for i in range(24, 32):
            o.append(f'v_add_f32 v{SUM+(i&3)}, v{SUM+(i&3)}, v{S+i}')
        for i in range(24, 32, 2): o.append(f'v_cvt_pk_bf16_f32 v{P+(i>>1)}, v{S+i}, v{S+i+1}')
        o.append(f'v_add_f32 v{SUM}, v{SUM}, v{SUM+1}')
        o.append(f'v_add_f32 v{SUM+2}, v{SUM+2}, v{SUM+3}')
        o.append(f'v_add_f32 v{SUM}, v{SUM}, v{SUM+2}')
        o.append(f'v_add_f32 v{LS}, v{LS}, v{SUM}')
        return o
    valu_old.cnt = 0
    if 'newmax' not in XF:
        NV = 256 if R8 else (244 if MS else 224)
        if MS:
            for i in range(16): k(f'v_mov_b32 v{LA+i}, 0')
            for i in range(4): k(f'v_mov_b32 v{ON+i}, 0x3f803f80')
        valuR = valuR_old; valu = valu_old
        k(f'v_mov_b32 v{CT}, 0x41800000')
    def rescale(db):
        return []
        return [f'v_mul_f32 v{O+db*16+i}, v{AL}, v{O+db*16+i}' for i in range(16)]

    PF = 8 if R8 else 4
    WG = 4 if R8 else 1
    def mlist(kidx):
        seq = []
        if kidx < NT:
            for n in range(16): seq.append((qk(n), kread(kidx % 4, n), ('qk', n)))
        if kidx >= 1:
            for n in range(16): seq.append((pv(n), vread((kidx - 1) % 4, n), ('pv', n)))
        return seq
    def prefetch(kidx):
        for (m, rd, tag) in mlist(kidx)[:PF]:
            for x in rd: k(x)
    def tick(acc):
        if 'phase' not in XF: return
        k(f'''
        s_memtime s[74:75]
        s_waitcnt lgkmcnt(0)
        s_sub_u32 s76, s74, s72
        s_add_u32 s{acc}, s{acc}, s76
        s_mov_b32 s72, s74
        ''')
    def mphase(kidx, prefetched):
        tick(77)
        if 'noprio' not in XF: k('s_setprio 3')
        _mphase(kidx, prefetched)
        if 'noprio' not in XF: k('s_setprio 0')
        tick(70)
    def _mphase(kidx, prefetched):
        seq = mlist(kidx)
        if not prefetched: prefetch(kidx)
        n = len(seq)
        vr = valuR()
        if 'noround' in XF: vr = vr[96:]
        if 'fp32s' in XF: vr = [x for x in vr if not x.startswith('v_cvt_pk_bf16_f32')]
        cut = len(vr)
        if 'cut75' in XF: cut = 72
        if 'cut50' in XF: cut = 48
        if kidx < NT: mphase.rest = vr[cut:]
        vr = vr[:cut]
        for i, (m, rd, tag) in enumerate(seq):
            if tag[0] == 'pv' and tag[1] == 0:
                if 'pvlow' in XF: k('s_setprio 0')
                for x in rescale(0): k(x)
            if i % WG == 0:
                cnt = sum(len(seq[j][1]) for j in range(i + WG, min(i + PF, n)))
                k(f's_waitcnt lgkmcnt({cnt})')
            k(m)
            if MS and tag[0] == 'pv' and tag[1] < 4:
                j = tag[1]
                k(f'v_mfma_f32_32x32x16_bf16 v[{LA}:{LA+15}], v[{ON}:{ON+3}], v[{P+4*j}:{P+4*j+3}], v[{LA}:{LA+15}]')
            if i + PF < n:
                for x in seq[i + PF][1]: k(x)
            if 1 <= kidx < NT and i in (1, 5, 9, 13):
                j = (i - 1) // 4
                if j == 0:
                    k(f'''
                    s_add_u32 s52, s46, {vsl(kidx + 1)}
                    ''')
                k(f'''
                s_add_u32 m0, s52, {j*1024}
                s_nop 0
                buffer_load_dwordx4 v{DM+j}, s[12:15], s47 offen lds
                ''')
                if j == 3:
                    k('s_add_u32 s47, s47, 16384')
                    if kidx <= 4:
                        k(f'''
                        s_cmp_lg_u32 s35, 0
                        s_cbranch_scc1 {L('pf%d' % kidx)}
                        buffer_load_dword v{PFD}, v{PFA}, s[16:19], 0 offen offset:0
                        v_add_u32 v{PFA}, 4096, v{PFA}
                        {L('pf%d' % kidx)}:
                        ''')
            if tag[0] == 'pv' and kidx < NT:
                lo = tag[1] * len(vr) // 16; hi = (tag[1] + 1) * len(vr) // 16
                for x in vr[lo:hi]: k(x)
        if kidx == 0:
            for x in vr: k(x)
    def vphase(kidx):
        dma_slot = None
        va = valu()
        if MS:
            va = [x for x in va if not any(x.startswith(p) for p in ('v_add_f32 v%d,' % SUM, 'v_add_f32 v%d,' % (SUM+1), 'v_add_f32 v%d,' % (SUM+2), 'v_add_f32 v%d,' % (SUM+3),
                  'v_mov_b32 v%d,' % SUM, 'v_mov_b32 v%d,' % (SUM+1), 'v_mov_b32 v%d,' % (SUM+2), 'v_mov_b32 v%d,' % (SUM+3), 'v_add_f32 v%d,' % LS))]
            va = [x.replace('v_mul_f32 v%d, v%d, v%d' % (LS, AL, LS), 'v_mul_f32 v%d, v%d, v%d' % (LA, AL, LA)) for x in va]
        if 'noexp' in XF: va = [x.replace('v_exp_f32', 'v_mov_b32') for x in va]
        if 'nosum' in XF: va = [x for x in va if not (x.startswith('v_add_f32 v%d' % SUM) or x.startswith('v_add_f32 v%d' % (SUM+1)) or x.startswith('v_add_f32 v%d' % (SUM+2)) or x.startswith('v_add_f32 v%d' % (SUM+3)))]
        tick(77)
        for x in mphase.rest: k(x)
        for x in va: k(x)
        prefetch(kidx + 1)
        tick(71)
        gbar(0, kidx)
    def gbar(grp, kidx):
        if 'onebar' not in XF:
            if grp == 0: k('s_waitcnt vmcnt(%d)' % (0 if kidx == NT - 1 else 4))
            k('s_barrier')
            return
        gbar.n += 1
        k(f'''
        s_cmp_lg_u32 s49, {grp}
        s_cbranch_scc1 {L('gb%d' % gbar.n)}
        s_waitcnt vmcnt({0 if kidx == NT - 1 else 4})
        s_barrier
        {L('gb%d' % gbar.n)}:
        ''')
    gbar.n = 0
    vphase.cnt = 0

    GA = KF; GAb = KF + 4; GB = VF; GBb = VF + 2; GD = VF + 4
    def XFr(st): return P + 4 * st
    def WFr(st, b): return S + 16 * st + 4 * b
    k(f'''
    v_and_b32 v{T}, 31, v0
    v_lshrrev_b32 v{T+1}, 5, v0
    v_bfe_u32 v{T+2}, v{T}, 1, 3
    v_xor_b32 v{T+2}, v{T+1}, v{T+2}
    v_lshlrev_b32 v{T+2}, 4, v{T+2}
    v_lshl_add_u32 v{T+2}, v{T}, 7, v{T+2}
    s_lshl_b32 s37, s34, 12
    v_add_u32 v{GAb}, s37, v{T+2}
    v_xor_b32 v{GAb+1}, 32, v{GAb}
    v_xor_b32 v{GAb+2}, 64, v{GAb}
    v_xor_b32 v{GAb+3}, 96, v{GAb}
    v_and_b32 v{T+2}, 15, v0
    v_lshrrev_b32 v{T+3}, 2, v{T+2}
    v_lshl_add_u32 v{T+4}, v{T+1}, 3, v{T+3}
    v_lshlrev_b32 v{T+4}, 7, v{T+4}
    v_bfe_u32 v{T+5}, v0, 4, 1
    v_and_b32 v{T+6}, 2, v{T+3}
    v_xor_b32 v{T+5}, v{T+5}, v{T+6}
    v_lshl_add_u32 v{T+4}, v{T+5}, 5, v{T+4}
    v_and_b32 v{T+5}, 1, v{T+2}
    v_lshl_add_u32 v{T+4}, v{T+5}, 4, v{T+4}
    v_bfe_u32 v{T+5}, v{T+2}, 1, 1
    v_lshl_add_u32 v{T+4}, v{T+5}, 3, v{T+4}
    v_add_u32 v{GBb}, 32768, v{T+4}
    v_xor_b32 v{GBb+1}, 64, v{GBb}
    v_lshrrev_b32 v{T+2}, 3, v0
    v_and_b32 v{T+3}, 7, v0
    v_lshrrev_b32 v{T+4}, 4, v0
    s_lshl_b32 s37, s36, 8
    s_lshl_b32 s38, s34, 5
    s_add_u32 s37, s37, s38
    ''')
    for a in range(4):
        k(f'''
        v_add_u32 v{T+5}, {(4*a)&7}, v{T+4}
        v_and_b32 v{T+5}, 7, v{T+5}
        v_xor_b32 v{T+5}, v{T+3}, v{T+5}
        v_lshlrev_b32 v{T+5}, 4, v{T+5}
        v_add_u32 v{T+6}, s37, v{T+2}
        v_add_u32 v{T+6}, {8*a}, v{T+6}
        v_lshl_add_u32 v{GD+a}, v{T+6}, 11, v{T+5}
        ''')
    k(f'''
    s_and_b32 s37, s34, 3
    s_lshl_b32 s37, s37, 4
    s_lshl_b32 s38, s33, 8
    s_lshl_b32 s39, s49, 7
    s_add_u32 s38, s38, s39
    v_and_b32 v{T+5}, 1, v{T+4}
    v_lshlrev_b32 v{T+5}, 1, v{T+5}
    v_lshrrev_b32 v{T+6}, 1, v{T+3}
    v_xor_b32 v{T+5}, v{T+6}, v{T+5}
    v_lshlrev_b32 v{T+5}, 5, v{T+5}
    v_and_b32 v{T+6}, 1, v{T+3}
    v_lshl_add_u32 v{T+5}, v{T+6}, 4, v{T+5}
    v_add_u32 v{T+5}, s38, v{T+5}
    ''')
    for b in range(2):
        k(f'''
        v_add_u32 v{T+6}, s37, v{T+2}
        v_add_u32 v{T+6}, {8*b}, v{T+6}
        v_lshl_add_u32 v{GD+4+b}, v{T+6}, 13, v{T+5}
        ''')
    k(f'''
    s_lshl_b32 s90, s34, 12
    s_lshl_b32 s91, s34, 11
    s_add_u32 s91, s91, 32768
    ''')
    def gdma(st):
        sl = (st % 3) * STG
        k(f's_mov_b32 s92, {st*128}')
        k(f's_mov_b32 s93, {st*64*8192}')
        for a in range(4):
            k(f'''
            s_add_u32 m0, s90, {sl + a*1024}
            s_nop 0
            buffer_load_dwordx4 v{GD+a}, s[8:11], s92 offen lds
            ''')
        for b in range(2):
            k(f'''
            s_add_u32 m0, s91, {sl + b*1024}
            s_nop 0
            buffer_load_dwordx4 v{GD+4+b}, s[84:87], s93 offen lds
            ''')
    def gaddr(st):
        sl = (st % 3) * STG
        for i in range(4): k(f'v_add_u32 v{GA+i}, {sl}, v{GAb+i}')
        for i in range(2): k(f'v_add_u32 v{GB+i}, {sl}, v{GBb+i}')
    def greads(ks, st):
        o = [f'ds_read_b128 v[{XFr(st)}:{XFr(st)+3}], v{GA+ks}']
        for b in range(4):
            for x in range(2):
                r = WFr(st, b) + 2 * x
                o.append(f'ds_read_b64_tr_b16 v[{r}:{r+1}], v{GB+(b&1)} offset:{(b>>1)*8192 + (16*ks+4*x)*128}')
        return o
    def gmf(st, first):
        o = []
        for b in range(4):
            d = O + 16 * b
            c = '0' if first else f'v[{d}:{d+15}]'
            o.append(f'v_mfma_f32_32x32x16_bf16 v[{d}:{d+15}], v[{WFr(st,b)}:{WFr(st,b)+3}], v[{XFr(st)}:{XFr(st)+3}], {c}')
        return o
    k(f'''
    s_cmp_eq_u32 s49, 0
    s_cbranch_scc1 {L("gp0")}
    ''')
    dma(0)
    k(f'{L("gp0")}:')
    gdma(0); gdma(1); gdma(2)
    k('s_waitcnt vmcnt(12)')
    k('s_barrier')
    gaddr(0)
    for x in greads(0, 0): k(x)
    NG = 16
    for st in range(NG):
        for ks in range(4):
            k('s_waitcnt lgkmcnt(0)')
            rd = []
            if ks < 3:
                rd = greads(ks + 1, (ks + 1) & 1)
            elif st < NG - 1:
                k(f's_waitcnt vmcnt({6 if st + 2 < NG else 0})')
                k('s_barrier')
                gaddr(st + 1)
                rd = greads(0, 0)
            mf = gmf(ks & 1, st == 0 and ks == 0)
            for i, m in enumerate(mf):
                k(m)
                for x in rd[i * 3:(i + 1) * 3 if i < 3 else None]: k(x)
            if ks == 3 and st + 3 < NG: gdma(st + 3)
            if ks == 3 and st == NG - 2:
                k(f'''
                s_cmp_eq_u32 s49, 0
                s_cbranch_scc1 {L("gp1")}
                ''')
                dma(1); dma(2); dma(3)
                k(f'''
                s_branch {L("gp2")}
                {L("gp1")}:
                ''')
                dma(0); dma(1)
                k(f'{L("gp2")}:')
    for b in range(4):
        for jj in range(2):
            for e in range(4):
                a = O + 16 * b + 8 * jj + 2 * e
                k(f'v_cvt_pk_bf16_f32 v{Q + 4*(2*b+jj) + e}, v{a}, v{a+1}')
    for i in range(64):
        k(f'v_mov_b32 v{O+i}, 0')
    k(f'''
    s_cmp_eq_u32 s49, 0
    s_cbranch_scc1 {L("go")}
    s_waitcnt vmcnt(8)
    ''')
    if 'onebar' not in XF: k('s_barrier')
    k(f'{L("go")}:')
    if 'onebar' in XF: k('s_barrier')
    if 'marks' in XF:
        k('s_memtime s[80:81]\ns_waitcnt lgkmcnt(0)')
    mphase(0, False)
    gbar(1, 0)
    vphase(0)
    k('s_mov_b32 s35, 0')
    k(f'{L("loop")}:')
    for kk in range(1, 5):
        mphase(kk, True)
        gbar(1, kk)
        vphase(kk)
    k(f'''
    s_add_u32 s35, s35, 1
    s_cmp_lt_u32 s35, 7
    s_cbranch_scc1 {L("loop")}
    ''')
    for kk in range(29, 32):
        mphase(kk, True)
        gbar(1, kk)
        vphase(kk)
    mphase(32, True)
    if 'marks' in XF:
        k('s_memtime s[82:83]\ns_waitcnt lgkmcnt(0)')
    if 'onebar' not in XF:
        k(f'''
        s_cmp_lg_u32 s49, 0
        s_cbranch_scc1 {L("fin")}
        s_waitcnt vmcnt(0)
        s_barrier
        {L("fin")}:
        ''')
    k(f'''
    ''')
    if MS:
        k(f'v_mov_b32 v{LS}, v{LA}')
    else:
        k(f'''
        v_mov_b32 v{T+1}, v{LS}
        v_permlane32_swap_b32 v{LS}, v{T+1}
        v_add_f32 v{LS}, v{LS}, v{T+1}
        ''')
    k(f'''
    v_rcp_f32 v{T+2}, v{LS}
    v_and_b32 v{T}, 31, v0
    v_lshrrev_b32 v{T+1}, 5, v0
    s_lshl_b32 s37, s36, 8
    s_lshl_b32 s38, s34, 5
    s_add_u32 s37, s37, s38
    v_add_u32 v{T+3}, s37, v{T}
    v_lshlrev_b32 v{T+3}, 13, v{T+3}
    s_lshl_b32 s38, s33, 8
    v_lshl_add_u32 v{T+4}, v{T+1}, 3, s38
    v_add_u32 v{T+3}, v{T+3}, v{T+4}
    v_fma_f32 v{T+4}, -v{T+2}, v{LS}, 1.0
    v_fma_f32 v{T+2}, v{T+4}, v{T+2}, v{T+2}
    ''')
    k(f'''
    s_mul_i32 s38, s34, 8704
    s_add_u32 s38, s38, {90*1024}
    v_mul_u32_u24 v{T+5}, 272, v{T}
    v_lshl_add_u32 v{T+5}, v{T+1}, 3, v{T+5}
    v_add_u32 v{T+5}, s38, v{T+5}
    v_lshrrev_b32 v{T+6}, 4, v0
    v_and_b32 v{T+7}, 15, v0
    v_add_u32 v{T+3}, s37, v{T+6}
    v_lshlrev_b32 v{T+3}, 13, v{T+3}
    s_lshl_b32 s39, s33, 8
    v_lshl_add_u32 v{T+4}, v{T+7}, 4, s39
    v_add_u32 v{T+3}, v{T+3}, v{T+4}
    v_mul_u32_u24 v{T+6}, 272, v{T+6}
    v_lshl_add_u32 v{T+6}, v{T+7}, 4, v{T+6}
    v_add_u32 v{T+6}, s38, v{T+6}
    ''')
    for db in range(4):
        for g in range(4):
            r = O + db * 16 + g * 4
            for e in range(4):
                k(f'v_mul_f32 v{r+e}, v{T+2}, v{r+e}')
            k(f'''
            v_cvt_pk_bf16_f32 v{r}, v{r}, v{r+1}
            v_cvt_pk_bf16_f32 v{r+1}, v{r+2}, v{r+3}
            ds_write_b64 v{T+5}, v[{r}:{r+1}] offset:{db*64+g*16}
            ''')
    k('s_waitcnt lgkmcnt(0)')
    for i in range(8):
        k(f'ds_read_b128 v[{O+4*i}:{O+4*i+3}], v{T+6} offset:{i*4*272}')
    for i in range(8):
        k(f's_waitcnt lgkmcnt({7-i})')
        k(f's_mov_b32 s39, {i*4*8192}')
        k(f'buffer_store_dwordx4 v[{O+4*i}:{O+4*i+3}], v{T+3}, s[20:23], s39 offen')
    if 'stamp' in XF:
        k(f'''
        s_memtime s[64:65]
        s_memrealtime s[66:67]
        s_waitcnt lgkmcnt(0)
        s_sub_u32 s64, s64, s60
        s_sub_u32 s66, s66, s62
        s_mov_b32 s58, 256
        s_mov_b32 s59, 0x00020000
        v_mov_b32 v2, s64
        v_mov_b32 v3, s66
        ''')
        if 'marks' in XF:
            k('''
            s_sub_u32 s80, s80, s60
            s_sub_u32 s82, s82, s60
            s_lshl_b32 s80, s80, 0
            v_mov_b32 v3, s82
            ''')
            k('v_mov_b32 v2, s80') if 'marks1' in XF else None
        if 'phase' in XF:
            k('''
            v_mov_b32 v2, s70
            v_mov_b32 v3, s71
            ''')
        k(f'''
        s_lshl_b32 s64, s34, 3
        v_mov_b32 v1, s64
        s_cmp_lg_u32 s2, 100
        s_cbranch_scc1 {L('end')}
        v_cmp_eq_u32 vcc, 0, v0
        s_and_saveexec_b64 s[68:69], vcc
        buffer_store_dwordx2 v[2:3], v1, s[56:59], 0 offen
        ''')
    k(f'''
    {L('end')}:
    s_endpgm
    ''')
    return k, dict(vgpr=NV, sgpr=96, grid=256, block=512, lds=160 * 1024)
```
